```python
import torch

def _softmax(x, axis=-1):
    return torch.softmax(x, dim=axis)
def _gelu(x):
    return torch.nn.functional.gelu(x, approximate="tanh")
def _silu(x):
    return torch.nn.functional.silu(x)
def _sigmoid(x):
    return torch.sigmoid(x)
def _layernorm(x, axis=-1, eps=1e-5):
    m = x.mean(dim=axis, keepdim=True)
    v = x.var(dim=axis, keepdim=True, unbiased=False)
    return (x - m) / torch.sqrt(v + eps)
def _scatter_add(tgt, idx, src, axis=0):
    return tgt.clone().index_add_(axis, idx, src)
def _segment_sum(src, seg, n):
    out = torch.zeros((n,) + src.shape[1:], dtype=src.dtype)
    return out.index_add_(0, seg, src)
def _pad(x, pw):
    flat = tuple(v for pair in reversed(pw) for v in pair)
    return torch.nn.functional.pad(x, flat)

kernel_name = 'sequential_preLN__mha_block__dense_activation_gelu__prompt'

def setup_inputs():

    _w = (lambda a: (lambda t: t.to(torch.bfloat16) if t.is_floating_point() else t)(torch.as_tensor(a)))
    def _A_setup():
        B, S, D, H = 1, 2048, 448, 16
        return {
            "x": _w((lambda *s: torch.randn(*s, dtype=torch.bfloat16) * 0.05)(B, S, D)),
            "wqkv": _w((lambda *s: torch.randn(*s, dtype=torch.bfloat16) * 0.05)(D, 3 * D)),
            "wo": _w((lambda *s: torch.randn(*s, dtype=torch.bfloat16) * 0.05)(D, D)),
        }
    _A_in = _A_setup()

    def _B_setup():
        B, S, D, F = 1, 2048, 448, 1792
        return {
            "x": _w((lambda *s: torch.randn(*s, dtype=torch.bfloat16) * 0.05)(B, S, D)),
            "w1": _w((lambda *s: torch.randn(*s, dtype=torch.bfloat16) * 0.8)(D, F) * (D ** -0.5)),
            "b1": _w((lambda *s: torch.randn(*s, dtype=torch.bfloat16) * 12.8)(F) * 0.01),
            "w2": _w((lambda *s: torch.randn(*s, dtype=torch.bfloat16) * 0.8)(F, D) * (F ** -0.5)),
            "b2": _w((lambda *s: torch.randn(*s, dtype=torch.bfloat16) * 12.8)(D) * 0.01),
        }
    _B_in = _B_setup()

    return {
        "A_x": _A_in["x"],
        "A_wqkv": _A_in["wqkv"],
        "A_wo": _A_in["wo"],
        "B_x": _B_in["x"],
        "B_w1": _B_in["w1"],
        "B_b1": _B_in["b1"],
        "B_w2": _B_in["w2"],
        "B_b2": _B_in["b2"],
    }

def reference(A_x, A_wqkv, A_wo, B_x, B_w1, B_b1, B_w2, B_b2):
    def _A_ref(x, wqkv, wo):
        B, S, D = x.shape
        H = 16
        Dh = D // H
        qkv = (lambda x, *d: x.permute(*d))((x @ wqkv).reshape(B, S, 3, H, Dh), 2, 0, 3, 1, 4)
        q, k, v = qkv[0], qkv[1], qkv[2]
        scores = torch.einsum("bhqd,bhkd->bhqk", q, k) * (Dh ** -0.5)
        p = _softmax(scores, axis=-1)
        o = torch.einsum("bhqk,bhkd->bhqd", p, v)
        return (lambda x, *d: x.permute(*d))(o, 0, 2, 1, 3).reshape(B, S, D) @ wo

    def _B_ref(x, w1, b1, w2, b2):
        h = torch.einsum("bsd,df->bsf", x, w1) + b1
        h = _gelu(h)
        return torch.einsum("bsf,fd->bsd", h, w2) + b2

    x = A_x
    h = x + _A_ref(_layernorm(x, axis=-1), A_wqkv, A_wo)
    h2 = h + _B_ref(_layernorm(h, axis=-1), B_w1, B_b1, B_w2, B_b2)
    return h2
```

```python
from common import *

Q, O, S, P, KV = 32, 64, 128, 160, 176
MX = 224
RED = 0
XCH = 131072
FLAG = XCH + 4096

def kv(kb): return KV + 16*(kb % 3)

def load_kv(e, kb):
    b = kv(kb)
    e(f"s_add_u32 s30, s42, {kb*2048}")
    e(f"buffer_load_dwordx4 {vr(b,4)}, v1, s[4:7], s30 offen")
    e(f"buffer_load_dwordx4 {vr(b+4,4)}, v1, s[4:7], s30 offen offset:1024")
    e(f"s_add_u32 s30, s30, {2*MB}")
    e(f"buffer_load_dwordx4 {vr(b+8,4)}, v1, s[4:7], s30 offen")
    e(f"buffer_load_dwordx4 {vr(b+12,4)}, v1, s[4:7], s30 offen offset:1024")

def mfma(d, a, b, c):
    return f"v_mfma_f32_32x32x16_bf16 {vr(d,16)}, {vr(a,4)}, {vr(b,4)}, {c}"

def main_pass(e, sub):
    load_kv(e, 0); load_kv(e, 1)
    for r in range(64): e(f"v_mov_b32 v{O+r}, 0")
    def qk(n):
        kb, qb = n >> 2, n & 3; s = S + 16*(n & 1)
        return [mfma(s, kv(kb), Q+8*qb, "0"), mfma(s, kv(kb)+4, Q+8*qb+4, vr(s,16))]
    def pv(n):
        kb, qb = n >> 2, n & 3; p = P + 8*(n & 1); o = O + 16*qb
        return [mfma(o, kv(kb)+8, p, vr(o,16)), mfma(o, kv(kb)+12, p+4, vr(o,16))]
    def valu(n):
        s = S + 16*(n & 1); p = P + 8*(n & 1); qb = n & 3; g = []
        for k in range(4):
            x = []
            if sub: x += [f"v_sub_f32 v{s+4*k+i}, v{s+4*k+i}, v{MX+qb}" for i in range(4)]
            x += [f"v_exp_f32 v{s+4*k+i}, v{s+4*k+i}" for i in range(4)]
            x += [f"v_cvt_pk_bf16_f32 v{p+2*k+i}, v{s+4*k+2*i}, v{s+4*k+2*i+1}" for i in range(2)]
            g.append(x)
        return g
    e("s_waitcnt vmcnt(4)")
    for x in qk(0): e(x)
    e("s_nop 7\ns_nop 3")
    for n in range(32):
        if (n+1) % 4 == 0 and n+1 < 32:
            e(f"s_waitcnt vmcnt({4 if (n+1)//4 < 7 else 0})")
        m = (qk(n+1) if n+1 < 32 else [None, None]) + (pv(n-1) if n else [None, None])
        g = valu(n)
        for k in range(4):
            if m[k]: e(m[k])
            for x in g[k]: e(x)
        if n % 4 == 1 and n//4 + 2 < 8:
            load_kv(e, n//4 + 2)
    e("s_nop 1")
    for x in pv(31): e(x)

def reduce_store(e, name):
    e("s_lshl_b32 s29, s24, 14\nv_add_u32 v2, s29, v1\ns_nop 7")
    for qb in range(4):
        for q in range(4):
            e(f"ds_write_b128 v2, {vr(O+16*qb+4*q,4)} offset:{qb*4096+q*1024}")
    e("s_waitcnt lgkmcnt(0)\ns_barrier")
    e("s_lshr_b32 s48, s24, 1\ns_and_b32 s49, s24, 1")
    e("s_lshl_b32 s29, s48, 12\ns_lshl_b32 s30, s49, 11\ns_add_u32 s30, s30, s29\nv_add_u32 v2, s30, v1")
    e("v_add_u32 v3, 0x10000, v2")
    e("v_and_b32 v4, 31, v0\nv_lshlrev_b32 v4, 4, v4\ns_add_u32 s29, s29, 3584\nv_add_u32 v4, s29, v4\nv_add_u32 v5, 0x10000, v4")
    for w in range(8):
        for q in range(2):
            e(f"ds_read_b128 {vr(O+8*w+4*q,4)}, v{2+(w>>2)} offset:{(w&3)*16384+q*1024}")
        e(f"ds_read_b32 v{S+w}, v{4+(w>>2)} offset:{(w&3)*16384}")
        if w == 3: e("s_waitcnt lgkmcnt(6)")
    e("s_waitcnt lgkmcnt(0)")
    for st in (4, 2, 1):
        for w in range(st):
            for r in range(0, 8, 2):
                e(f"v_pk_add_f32 {vr(O+8*w+r,2)}, {vr(O+8*w+r,2)}, {vr(O+8*(w+st)+r,2)}")
            e(f"v_add_f32 v{S+w}, v{S+w}, v{S+w+st}")
    e(f"v_rcp_f32 v{S+1}, v{S}")
    e(f"v_cmp_le_f32 vcc, 0x21800000, v{S}\nv_cmp_ge_f32 s[50:51], s44, v{S}")
    for r in range(8):
        e(f"v_mul_f32 v{O+r}, v{O+r}, v{S+1}")
    e("s_and_b64 s[50:51], s[50:51], vcc")
    e("s_cmp_eq_u32 s49, 1\ns_cselect_b64 s[52:53], s[46:47], 0")
    for r in range(4, 8):
        e(f"v_cndmask_b32 v{O+r}, v{O+r}, 0, s[52:53]")
    for i in range(4):
        e(f"v_cvt_pk_bf16_f32 v{P+i}, v{O+2*i}, v{O+2*i+1}")
    e("s_lshl_b32 s29, s26, 2\ns_add_u32 s29, s29, s48\ns_lshl_b32 s29, s29, 5")
    e("s_lshl_b32 s30, s25, 1\ns_add_u32 s29, s29, s30\ns_add_u32 s29, s29, s49\ns_lshl_b32 s29, s29, 10")
    e(f"buffer_store_dwordx4 {vr(P,4)}, v1, s[8:11], s29 offen")

def gen_attn(name):
    e = Em()
    kernel_head(e, name)
    e(f"s_cmp_ge_u32 s2, 256\ns_cbranch_scc1 {name}_end")
    load_ptr(e, 34, 'ws')
    e("v_lshrrev_b32 v1, 6, v0\nv_and_b32 v0, 63, v0\ns_nop 0\nv_readfirstlane_b32 s24, v1")
    e("s_and_b32 s27, s2, 7\ns_lshr_b32 s28, s2, 3\ns_and_b32 s25, s28, 1\ns_lshl_b32 s27, s27, 1")
    e("s_add_u32 s25, s25, s27\ns_lshr_b32 s26, s28, 1")
    e("s_mov_b32 s46, 0\ns_mov_b32 s47, -1\ns_mov_b32 s44, 0x5d800000\ns_mov_b32 s45, 0")
    e("v_lshlrev_b32 v1, 4, v0")
    e("s_waitcnt lgkmcnt(0)")
    srd(e, 4, 34, 6*MB, WS_Q); srd(e, 8, 34, 2*MB, WS_O)
    e("s_lshl_b32 s29, s25, 6\ns_lshl_b32 s30, s26, 2\ns_add_u32 s30, s30, s29\ns_lshl_b32 s43, s30, 11")
    e(f"s_lshl_b32 s30, s24, 3\ns_add_u32 s30, s30, s29\ns_lshl_b32 s42, s30, 11\ns_add_u32 s42, s42, {WS_K}")
    for qb in range(4):
        for s in range(2):
            e(f"s_add_u32 s30, s43, {qb*2048}")
            e(f"buffer_load_dwordx4 {vr(Q+8*qb+4*s,4)}, v1, s[4:7], s30 offen offset:{s*1024}")
    e(f"v_mov_b32 v2, {FLAG}\nv_mov_b32 v3, 0\nds_write_b32 v2, v3")
    main_pass(e, False)
    e(f"{name}_reduce:")
    reduce_store(e, name)
    e(f"s_cmp_eq_u32 s45, 1\ns_cbranch_scc1 {name}_end")
    e(f"v_mov_b32 v2, {FLAG}\nv_mov_b32 v3, 1")
    e(f"s_cmp_eq_u64 s[50:51], -1\ns_cbranch_scc1 {name}_ok\nds_write_b32 v2, v3\n{name}_ok:")
    e("s_waitcnt lgkmcnt(0)\ns_barrier\nds_read_b32 v3, v2\ns_waitcnt lgkmcnt(0)\ns_nop 0")
    e(f"v_readfirstlane_b32 s29, v3\ns_nop 3\ns_cmp_eq_u32 s29, 0\ns_cbranch_scc1 {name}_end")
    e("s_mov_b32 s45, 1\ns_waitcnt vmcnt(0)")
    for qb in range(4): e(f"v_mov_b32 v{MX+qb}, 0xff800000")
    e("s_mov_b32 s48, 0")
    e(f"{name}_mx:")
    e("s_lshl_b32 s30, s48, 11\ns_add_u32 s30, s30, s42")
    e(f"buffer_load_dwordx4 {vr(KV,4)}, v1, s[4:7], s30 offen")
    e(f"buffer_load_dwordx4 {vr(KV+4,4)}, v1, s[4:7], s30 offen offset:1024")
    e("s_waitcnt vmcnt(0)")
    for qb in range(4):
        e(mfma(S, KV, Q+8*qb, "0")); e(mfma(S, KV+4, Q+8*qb+4, vr(S,16)))
        e("s_nop 7\ns_nop 7")
        for r in range(0, 16, 2):
            e(f"v_max3_f32 v{MX+qb}, v{MX+qb}, v{S+r}, v{S+r+1}")
        e("s_nop 7")
    e(f"s_add_u32 s48, s48, 1\ns_cmp_lt_u32 s48, 8\ns_cbranch_scc1 {name}_mx")
    e(f"s_lshl_b32 s29, s24, 9\ns_add_u32 s29, s29, {XCH}\nv_and_b32 v4, 31, v0\nv_lshlrev_b32 v4, 2, v4\nv_add_u32 v2, s29, v4")
    for qb in range(4):
        swap_add(e, MX+qb, 3, "v_max_f32")
        e(f"ds_write_b32 v2, v{MX+qb} offset:{qb*128}")
    e(f"s_waitcnt lgkmcnt(0)\ns_barrier\nv_add_u32 v2, {XCH}, v4")
    for qb in range(4):
        for w in range(8):
            e(f"ds_read_b32 v{S+w}, v2 offset:{w*512+qb*128}")
        e("s_waitcnt lgkmcnt(0)")
        e(f"v_max3_f32 v{MX+qb}, v{S}, v{S+1}, v{S+2}\nv_max3_f32 v{MX+qb}, v{MX+qb}, v{S+3}, v{S+4}")
        e(f"v_max3_f32 v{MX+qb}, v{MX+qb}, v{S+5}, v{S+6}\nv_max_f32 v{MX+qb}, v{MX+qb}, v{S+7}")
    main_pass(e, True)
    e(f"s_branch {name}_reduce")
    e(f"{name}_end:")
    e("s_endpgm")
    return e.text()
```

```python
MAIN = "sequential_preLN__mha_block__dense_activation_gelu__prompt_kernel"
MB = 1 << 20
WS_Q, WS_K, WS_V, WS_O, WS_H, WS_G = 0, 2*MB, 4*MB, 6*MB, 8*MB, 10*MB
ARG = dict(x=0, wqkv=8, wo=16, w1=32, b1=40, w2=48, b2=56, out=64, dbg=72, ws=80)

class Em:
    def __init__(self):
        self.l = []
    def __call__(self, s):
        for x in s.split("\n"):
            x = x.strip()
            if x:
                self.l.append(x if x.endswith(":") else "    " + x)
    def text(self):
        return "\n".join(self.l) + "\n"

def vr(b, n=1):
    return f"v{b}" if n == 1 else f"v[{b}:{b+n-1}]"
def sr(b, n=1):
    return f"s{b}" if n == 1 else f"s[{b}:{b+n-1}]"

def kernel_head(e, name):
    e.l.append(f".globl {name}\n.p2align 8\n.type {name},@function")
    e(f"{name}:")

def kernel_desc(name, vgpr=256):
    acc = (vgpr + 3) // 4 * 4
    return f""".p2align 6
.amdhsa_kernel {name}
  .amdhsa_next_free_vgpr {vgpr}
  .amdhsa_next_free_sgpr 96
  .amdhsa_accum_offset {acc}
  .amdhsa_group_segment_fixed_size 0
  .amdhsa_kernarg_size 88
  .amdhsa_user_sgpr_count 2
  .amdhsa_user_sgpr_kernarg_segment_ptr 1
  .amdhsa_system_sgpr_workgroup_id_x 1
.end_amdhsa_kernel
"""

def load_ptr(e, sdst, arg):
    e(f"s_load_dwordx2 {sr(sdst,2)}, s[0:1], {ARG[arg]}")

def srd(e, d, pbase, nbytes, off=0):
    if off:
        e(f"s_add_u32 s{d}, s{pbase}, {off}")
        e(f"s_addc_u32 s{d+1}, s{pbase+1}, 0")
    else:
        e(f"s_mov_b32 s{d}, s{pbase}")
        e(f"s_mov_b32 s{d+1}, s{pbase+1}")
    e(f"s_mov_b32 s{d+2}, {nbytes}")
    e(f"s_mov_b32 s{d+3}, 0x00020000")

def swap_add(e, v, t, op="v_add_f32"):
    e(f"v_mov_b32 v{t}, v{v}")
    e("s_nop 1")
    e(f"v_permlane32_swap_b32 v{v}, v{t}")
    e("s_nop 1")
    e(f"{op} v{v}, v{v}, v{t}")

def unpack_bf16(e, dst, src, n):
    for i in range(n):
        e(f"v_and_b32 v{dst+2*i+1}, 0xffff0000, v{src+i}")
        e(f"v_lshlrev_b32 v{dst+2*i}, 16, v{src+i}")
```

```python
from common import *

SLOT = 32768
STAT = 131072
ONES = 45
FR, ACC = 32, 64
V_SUM, V_SQ, V_CS = 128, 129, 130
AUX = 132
T = 148

CFG = {
 'qkv':  dict(t=1, nwg=192, nc=7,  wbytes=448*1344*2, wstride=2688, wcol=224, wrows=64),
 'ffn1': dict(t=1, nwg=224, nc=7,  wbytes=448*1792*2, wstride=3584, wcol=256, wrows=64),
 'wo':   dict(t=2, nwg=224, nc=4,  wbytes=448*448*2,  wstride=896,  wcol=128, wrows=112, ns=32),
 'ffn2': dict(t=2, nwg=224, nc=14, wbytes=1792*448*2, wstride=896,  wcol=128, wrows=128, ns=112),
}

def acc(fb, tb): return ACC + 16*(2*fb+tb)

def prologue(e, name, kind, c):
    e(f"s_cmp_ge_u32 s2, {c['nwg']}")
    e(f"s_cbranch_scc1 {name}_end")
    warg = dict(qkv='wqkv', ffn1='w1', wo='wo', ffn2='w2')[kind]
    load_ptr(e, 32, warg); load_ptr(e, 34, 'ws'); load_ptr(e, 36, 'x'); load_ptr(e, 40, 'out')
    load_ptr(e, 38, 'b1' if kind == 'ffn1' else 'b2')
    e("v_lshrrev_b32 v1, 6, v0")
    e("v_and_b32 v0, 63, v0")
    e("s_and_b32 s27, s2, 7")
    e("v_readfirstlane_b32 s24, v1")
    e("s_lshr_b32 s28, s2, 3")
    if c['t'] == 1:
        e("s_and_b32 s25, s27, 3\ns_lshl_b32 s25, s25, 2\ns_and_b32 s29, s28, 3\ns_add_u32 s25, s25, s29")
        e("s_lshr_b32 s26, s27, 2")
        e(f"s_mul_i32 s26, s26, {6 if kind == 'qkv' else 7}")
        e("s_lshr_b32 s29, s28, 2\ns_add_u32 s26, s26, s29")
    else:
        e("s_lshl_b32 s25, s27, 2\ns_and_b32 s29, s28, 3\ns_add_u32 s25, s25, s29\ns_lshr_b32 s26, s28, 2")
    e(f"s_mov_b32 s{ONES}, 0x3f803f80")
    e("s_mov_b32 s46, 0\ns_mov_b32 s47, -1")
    e("s_waitcnt lgkmcnt(0)")
    srd(e, 4, 32, c['wbytes'])
    if kind == 'qkv':
        srd(e, 8, 36, 2048*896); srd(e, 12, 34, 6*MB, WS_Q)
    elif kind == 'ffn1':
        srd(e, 8, 34, 64*28*1024, WS_H); srd(e, 12, 34, 64*112*1024, WS_G); srd(e, 16, 38, 1792*2)
    elif kind == 'wo':
        srd(e, 8, 34, 64*32*1024, WS_O); srd(e, 12, 34, 64*28*1024, WS_H); srd(e, 20, 36, 2048*896)
    else:
        srd(e, 8, 34, 64*112*1024, WS_G); srd(e, 12, 40, 2048*896); srd(e, 16, 38, 896)
        srd(e, 20, 34, 64*28*1024, WS_H)
    e("s_cmp_lt_u32 s24, 4")
    e(f"s_cbranch_scc1 {name}_compute")

def loader(e, name, kind, c):
    ws, nc = c['wstride'], c['nc']
    e("s_sub_u32 s24, s24, 4")
    e("s_lshl_b32 s44, s24, 12")
    if c['t'] == 1:
        e("v_lshrrev_b32 v2, 4, v0\nv_and_b32 v3, 15, v0\nv_lshlrev_b32 v4, 2, v2\nv_xor_b32 v3, v3, v4")
        wrpi = 4
    else:
        e("v_lshrrev_b32 v2, 3, v0\nv_and_b32 v3, 7, v0\nv_lshrrev_b32 v4, 4, v0\nv_and_b32 v4, 1, v4")
        e("v_lshlrev_b32 v4, 2, v4\nv_xor_b32 v3, v3, v4")
        wrpi = 8
    e(f"s_mov_b32 s30, {ws}\nv_mul_lo_u32 v2, v2, s30\nv_lshl_add_u32 v10, v3, 4, v2")
    e(f"s_mul_i32 s42, s24, {4*wrpi*ws}\ns_mul_i32 s30, s26, {c['wcol']}\ns_add_u32 s42, s42, s30")
    if kind == 'qkv':
        e("v_lshrrev_b32 v2, 3, v0\nv_and_b32 v3, 7, v0\nv_lshrrev_b32 v4, 4, v0\nv_xor_b32 v3, v3, v4")
        e("s_mov_b32 s30, 896\nv_mul_lo_u32 v2, v2, s30\nv_lshl_add_u32 v11, v3, 4, v2")
        e("v_xor_b32 v3, 4, v3\nv_lshl_add_u32 v12, v3, 4, v2")
        e("s_lshl_b32 s43, s25, 7\ns_lshl_b32 s30, s24, 5\ns_add_u32 s43, s43, s30\ns_mul_i32 s43, s43, 896")
        aoff = lambda ch, i: ch*128 + i*8*896
        areg = lambda i: 11 + (i & 1)
    else:
        e("v_lshlrev_b32 v11, 4, v0")
        areg = lambda i: 11
        if kind == 'ffn1':
            e("s_lshl_b32 s43, s25, 2\ns_add_u32 s43, s43, s24\ns_mul_i32 s43, s43, 28672")
            aoff = lambda ch, i: (4*ch + i)*1024
        else:
            ns = c['ns']
            e(f"s_lshl_b32 s43, s25, 1\ns_lshr_b32 s30, s24, 1\ns_add_u32 s43, s43, s30\ns_mul_i32 s43, s43, {ns*1024}")
            e("s_and_b32 s30, s24, 1\ns_lshl_b32 s30, s30, 12\ns_add_u32 s43, s43, s30")
            aoff = lambda ch, i: (8*ch + i)*1024
    def issue(ch):
        so = (ch % 4)*SLOT
        for i in range(4):
            e(f"s_add_u32 m0, s44, {so + i*1024}")
            e(f"s_add_u32 s30, s42, {(c['wrows']*ch + wrpi*i)*ws}")
            e("buffer_load_dwordx4 v10, s[4:7], s30 offen lds")
            e(f"s_add_u32 m0, s44, {so + 16384 + i*1024}")
            e(f"s_add_u32 s30, s43, {aoff(ch, i)}")
            e(f"buffer_load_dwordx4 v{areg(i)}, s[8:11], s30 offen lds")
    issued = min(4, nc)
    for ch in range(issued): issue(ch)
    for ch in range(nc):
        e(f"s_waitcnt vmcnt({8*(issued-ch-1)})")
        e("s_barrier")
        if ch >= 1 and issued < nc:
            issue(issued); issued += 1
    e("s_endpgm")

def compute_addr(e, kind, c):
    e("v_lshrrev_b32 v10, 4, v0\nv_and_b32 v11, 1, v10\nv_lshrrev_b32 v12, 5, v0")
    e("v_bfe_u32 v13, v0, 2, 2\nv_and_b32 v14, 3, v0")
    e("v_and_b32 v15, 31, v0")
    if c['t'] == 1:
        e("s_and_b32 s30, s24, 1\ns_lshr_b32 s31, s24, 1")
        e("s_lshl_b32 s29, s31, 1\ns_add_u32 s48, s29, s30\ns_add_u32 s49, s29, 1\ns_sub_u32 s49, s49, s30")
        e("s_lshl_b32 s29, s30, 1\ns_add_u32 s50, s29, s31\ns_add_u32 s51, s29, 1\ns_sub_u32 s51, s51, s31")
        hrows = 8 if kind == 'qkv' else 4
        cb = 56 if kind == 'qkv' else 64
        e(f"v_mul_u32_u24 v16, {hrows}, v12\nv_add_u32 v16, v16, v13\nv_lshlrev_b32 v16, 8, v16")
        e("v_lshlrev_b32 v17, 5, v11\nv_lshl_add_u32 v17, v14, 3, v17\nv_lshlrev_b32 v18, 2, v13")
        for k, sfb in ((2, 48), (4, 49)):
            e(f"s_mul_i32 s29, s{sfb}, {cb}\nv_add_u32 v19, s29, v17")
            e("v_lshrrev_b32 v20, 4, v19\nv_xor_b32 v20, v20, v18\nv_and_b32 v19, 8, v19")
            e(f"v_lshl_add_u32 v19, v20, 4, v19\nv_add_u32 v{k}, v19, v16\nv_add_u32 v{k+1}, 0x10000, v{k}")
        if kind == 'qkv':
            e("v_bfe_u32 v19, v15, 1, 3\nv_xor_b32 v19, v19, v12\nv_lshlrev_b32 v19, 4, v19\nv_lshl_add_u32 v19, v15, 7, v19")
        else:
            e("v_lshlrev_b32 v19, 4, v0")
        for k, stb in ((6, 50), (8, 51)):
            e(f"s_lshl_b32 s29, s{stb}, 12\nv_add_u32 v{k}, s29, v19\nv_add_u32 v{k+1}, 0x10000, v{k}")
    else:
        wr = 28 if kind == 'wo' else 32
        e(f"s_mul_i32 s29, s24, {wr}\nv_lshl_add_u32 v16, v12, 2, v13\nv_add_u32 v16, s29, v16\nv_lshlrev_b32 v16, 7, v16")
        e("v_lshrrev_b32 v17, 1, v14\nv_lshl_add_u32 v17, v11, 1, v17")
        e("v_lshrrev_b32 v18, 1, v13\nv_lshlrev_b32 v18, 2, v18")
        e("v_and_b32 v19, 1, v14\nv_lshlrev_b32 v19, 3, v19\nv_add_u32 v16, v16, v19")
        for k, fb in ((2, 0), (4, 1)):
            e(f"v_add_u32 v20, {4*fb}, v17\nv_xor_b32 v20, v20, v18\nv_lshl_add_u32 v{k}, v20, 4, v16\nv_add_u32 v{k+1}, 0x10000, v{k}")
        e("s_lshl_b32 s29, s24, 11\nv_lshlrev_b32 v19, 4, v0\nv_add_u32 v6, s29, v19\nv_add_u32 v7, 0x10000, v6")
        e("v_add_u32 v8, 0x2000, v6\nv_add_u32 v9, 0x10000, v8")

def main_loop(e, kind, c, vform):
    t1 = c['t'] == 1
    spc = 4 if t1 else 2
    steps = [(ch, s) for ch in range(c['nc']) for s in range(spc)]
    def reads(n):
        ch, s = steps[n]; slot = ch % 4; hi = slot >> 1; so = (slot & 1)*SLOT; p = FR + 16*(n & 1)
        r = []
        astep = 4096 if t1 else 2048
        a2 = (1024 if kind == 'qkv' else 2048) if t1 else 1024
        for k, reg in ((0, 2), (1, 4)):
            o = so + s*astep
            r.append(f"ds_read_b64_tr_b16 {vr(p+4*k,2)}, v{reg+hi} offset:{o}")
            r.append(f"ds_read_b64_tr_b16 {vr(p+4*k+2,2)}, v{reg+hi} offset:{o+a2}")
        for k, reg in ((0, 6), (1, 8)):
            if kind == 'qkv':
                r.append(f"v_xor_b32 v{22+k}, {s << 5}, v{reg+hi}\nds_read_b128 {vr(p+8+4*k,4)}, v{22+k} offset:{so+16384}")
            else:
                r.append(f"ds_read_b128 {vr(p+8+4*k,4)}, v{reg+hi} offset:{so+16384+s*1024}")
        return r
    def mf(n, fb, tb):
        p = FR + 16*(n & 1); a, b = vr(p+4*fb, 4), vr(p+8+4*tb, 4)
        if vform: a, b = b, a
        d = vr(acc(fb, tb), 16)
        return f"v_mfma_f32_32x32x16_bf16 {d}, {a}, {b}, {'0' if n == 0 else d}"
    e("s_barrier")
    for x in reads(0): e(x)
    for n in range(len(steps)):
        p = FR + 16*(n & 1)
        e("s_waitcnt lgkmcnt(0)")
        nxt = reads(n+1) if n+1 < len(steps) else []
        if nxt and steps[n+1][0] != steps[n][0]:
            e("s_barrier")
        fill = []
        if t1:
            fill = [f"v_dot2c_f32_bf16 v{V_SUM}, s{ONES}, v{p+8+i}" for i in range(4)]
            fill += [f"v_dot2c_f32_bf16 v{V_SQ}, v{p+8+i}, v{p+8+i}" for i in range(4)]
            fill += [f"v_dot2c_f32_bf16 v{V_CS}, s{ONES}, v{p+i}" for i in range(4)]
        e(mf(n, 0, 0))
        for x in nxt[:3]: e(x)
        e(mf(n, 0, 1))
        for x in nxt[3:]: e(x)
        for x in fill[:4]: e(x)
        e(mf(n, 1, 0))
        for x in fill[4:8]: e(x)
        e(mf(n, 1, 1))
        for x in fill[8:]: e(x)

def store_fa(e, src, voff, soff, srdn=12):
    for i in range(8):
        e(f"v_cvt_pk_bf16_f32 v{T+40+i}, v{src+2*i}, v{src+2*i+1}")
    e(f"buffer_store_dwordx4 {vr(T+40,4)}, v{voff}, s[{srdn}:{srdn+3}], s{soff} offen")
    e(f"buffer_store_dwordx4 {vr(T+44,4)}, v{voff}, s[{srdn}:{srdn+3}], s{soff} offen offset:1024")

def stats_to_lds(e):
    e("s_nop 3")
    for v in (V_SUM, V_SQ, V_CS): swap_add(e, v, T)
    e(f"s_mov_b32 s29, {1.0/448!r}") if False else None
    e("s_mov_b32 s29, 0x3b124925")
    e(f"v_mul_f32 v{V_SUM}, s29, v{V_SUM}\nv_mul_f32 v{V_SQ}, s29, v{V_SQ}")
    e(f"v_fma_f32 v{V_SQ}, -v{V_SUM}, v{V_SUM}, v{V_SQ}\nv_max_f32 v{V_SQ}, 0, v{V_SQ}")
    e(f"v_add_f32 v{V_SQ}, 0x3727c5ac, v{V_SQ}\nv_rsq_f32 v{V_SQ}, v{V_SQ}\ns_nop 0")
    e(f"v_mul_f32 v{V_SUM}, v{V_SUM}, v{V_SQ}")
    e(f"s_lshl_b32 s29, s50, 7\ns_add_u32 s29, s29, {STAT}\nv_lshlrev_b32 v16, 2, v15\nv_add_u32 v17, s29, v16")
    e(f"ds_write_b32 v17, v{V_SQ}\nds_write_b32 v17, v{V_SUM} offset:512")
    e(f"s_lshl_b32 s29, s48, 7\ns_add_u32 s29, s29, {STAT}\nv_add_u32 v17, s29, v16")
    e(f"ds_write_b32 v17, v{V_CS} offset:1024")
    e("s_waitcnt lgkmcnt(0)\ns_barrier")

def epi_t1(e, kind, vform):
    stats_to_lds(e)
    e("v_lshlrev_b32 v18, 4, v12\nv_lshlrev_b32 v24, 4, v0")
    for fb in range(2):
        for tb in range(2):
            a = acc(fb, tb); sfb, stb = 48+fb, 50+tb
            lane_s, reg_s = (sfb, stb) if vform else (stb, sfb)
            e(f"s_lshl_b32 s29, s{lane_s}, 7\ns_add_u32 s29, s29, {STAT}\nv_add_u32 v17, s29, v16")
            e(f"s_lshl_b32 s29, s{reg_s}, 7\ns_add_u32 s29, s29, {STAT}\nv_add_u32 v19, s29, v18")
            if vform:
                e(f"ds_read_b32 v{T}, v17 offset:1024")
                for q in range(4):
                    e(f"ds_read_b128 {vr(T+4+4*q,4)}, v19 offset:{32*q}")
                    e(f"ds_read_b128 {vr(T+20+4*q,4)}, v19 offset:{512+32*q}")
                e("s_waitcnt lgkmcnt(0)")
                for r in range(16):
                    e(f"v_mul_f32 v{T+20+r}, v{T}, v{T+20+r}")
                    e(f"v_fma_f32 v{a+r}, v{a+r}, v{T+4+r}, -v{T+20+r}")
                e("v_cmp_gt_u32 vcc, 28, v15\nv_cmp_eq_u32 s[52:53], 28, v15\ns_nop 1")
                e(f"v_cndmask_b32 v{T+1}, 0, 1.0, s[52:53]")
                for r in range(16):
                    e(f"v_cndmask_b32 v{a+r}, v{T+1}, v{a+r}, vcc")
            else:
                e(f"ds_read_b32 v{T}, v17\nds_read_b32 v{T+1}, v17 offset:512")
                for q in range(4):
                    e(f"ds_read_b128 {vr(T+4+4*q,4)}, v19 offset:{1024+32*q}")
                e("s_waitcnt lgkmcnt(0)")
                if kind == 'qkv':
                    e(f"v_mul_f32 v{T}, s54, v{T}\nv_mul_f32 v{T+1}, s54, v{T+1}")
                    for r in range(16):
                        e(f"v_mul_f32 v{T+4+r}, v{T+1}, v{T+4+r}")
                        e(f"v_fma_f32 v{a+r}, v{a+r}, v{T}, -v{T+4+r}")
                    for r in range(12, 16):
                        e(f"v_cndmask_b32 v{a+r}, v{a+r}, 0, s[46:47]")
                else:
                    bb = AUX + 8*fb
                    unpack_bf16(e, T+20, bb, 8)
                    for r in range(0, 16, 2):
                        x = vr(a+r, 2); cs = vr(T+4+r, 2); b = vr(T+20+r, 2); u = vr(T+36, 2); w = vr(T+38, 2)
                        e(f"v_pk_fma_f32 {b}, {cs}, {vr(T,2)}, {b} op_sel:[0,1,0] op_sel_hi:[1,1,1] neg_lo:[1,0,0] neg_hi:[1,0,0]")
                        e(f"v_pk_fma_f32 {x}, {x}, {vr(T,2)}, {b} op_sel_hi:[1,0,1]")
                        e(f"v_pk_mul_f32 {u}, {x}, {x}")
                        e(f"v_pk_fma_f32 {u}, {u}, s[56:57], s[56:57] op_sel:[0,1,0] op_sel_hi:[1,1,0]")
                        e(f"v_pk_mul_f32 {u}, {u}, {x}")
                        e(f"v_exp_f32 v{T+38}, v{T+36}\nv_exp_f32 v{T+39}, v{T+37}\ns_nop 0")
                        e(f"v_pk_add_f32 {w}, {w}, 1.0 op_sel_hi:[1,0]")
                        e(f"v_rcp_f32 v{T+38}, v{T+38}\nv_rcp_f32 v{T+39}, v{T+39}\ns_nop 0")
                        e(f"v_pk_mul_f32 {x}, {x}, {w}")
            if kind == 'qkv':
                e(f"s_lshl_b32 s29, s26, 2\ns_add_u32 s29, s29, s{sfb}\ns_lshl_b32 s29, s29, 6")
                e(f"s_lshl_b32 s30, s25, 2\ns_add_u32 s29, s29, s30\ns_add_u32 s29, s29, s{stb}\ns_lshl_b32 s55, s29, 11")
            else:
                e(f"s_lshl_b32 s29, s25, 2\ns_add_u32 s29, s29, s{stb}\ns_mul_i32 s29, s29, 112")
                e(f"s_lshl_b32 s30, s26, 2\ns_add_u32 s30, s30, s{sfb}\ns_lshl_b32 s30, s30, 1\ns_add_u32 s29, s29, s30\ns_lshl_b32 s55, s29, 10")
            store_fa(e, a, 24, 55)

def pre_t2(e, kind):
    e("s_lshr_b32 s48, s24, 1\ns_and_b32 s50, s24, 1")
    e("s_lshl_b32 s29, s25, 1\ns_add_u32 s51, s29, s50")
    e("s_lshl_b32 s29, s26, 1\ns_add_u32 s49, s29, s48")
    e("s_lshl_b32 s29, s51, 5\nv_add_u32 v16, s29, v15\ns_mov_b32 s29, 896\nv_mul_lo_u32 v16, v16, s29")
    e("v_lshl_add_u32 v16, v12, 3, v16\ns_lshl_b32 s52, s49, 6")
    e("v_lshlrev_b32 v24, 4, v0")
    e("s_mul_i32 s29, s51, 28\ns_lshl_b32 s30, s49, 1\ns_add_u32 s29, s29, s30\ns_lshl_b32 s55, s29, 10")
    if kind == 'wo':
        for q in range(4):
            e(f"buffer_load_dwordx2 {vr(AUX+2*q,2)}, v16, s[20:23], s52 offen offset:{16*q}")
    else:
        e(f"buffer_load_dwordx4 {vr(AUX,4)}, v24, s[20:23], s55 offen")
        e(f"buffer_load_dwordx4 {vr(AUX+4,4)}, v24, s[20:23], s55 offen offset:1024")
        e("v_lshlrev_b32 v17, 3, v12")
        for q in range(4):
            e(f"buffer_load_dwordx2 {vr(AUX+8+2*q,2)}, v17, s[16:19], s52 offen offset:{16*q}")

def epi_t2(e, kind):
    e("s_barrier")
    e("s_lshl_b32 s29, s24, 14\nv_add_u32 v17, s29, v24\ns_nop 7")
    for b in range(4):
        for q in range(4):
            e(f"ds_write_b128 v17, {vr(ACC+16*b+4*q,4)} offset:{b*4096+q*1024}")
    e("s_waitcnt lgkmcnt(0)\ns_barrier")
    e("s_lshl_b32 s29, s48, 1\ns_add_u32 s29, s29, s50\ns_lshl_b32 s29, s29, 12\nv_add_u32 v17, s29, v24")
    for w in range(4):
        for q in range(4):
            e(f"ds_read_b128 {vr(ACC+16*w+4*q,4)}, v17 offset:{w*16384+q*1024}")
    e("s_waitcnt vmcnt(0)")
    unpack_bf16(e, T, AUX, 8)
    if kind == 'ffn2':
        unpack_bf16(e, T+16, AUX+8, 8)
        for r in range(0, 16, 2):
            e(f"v_pk_add_f32 {vr(T+r,2)}, {vr(T+r,2)}, {vr(T+16+r,2)}")
    e("s_waitcnt lgkmcnt(0)")
    for r in range(0, 16, 2):
        e(f"v_pk_add_f32 {vr(ACC+r,2)}, {vr(ACC+r,2)}, {vr(ACC+16+r,2)}")
        e(f"v_pk_add_f32 {vr(ACC+32+r,2)}, {vr(ACC+32+r,2)}, {vr(ACC+48+r,2)}")
        e(f"v_pk_add_f32 {vr(ACC+r,2)}, {vr(ACC+r,2)}, {vr(T+r,2)}")
        e(f"v_pk_add_f32 {vr(ACC+r,2)}, {vr(ACC+r,2)}, {vr(ACC+32+r,2)}")
    if kind == 'wo':
        store_fa(e, ACC, 24, 55)
    else:
        for i in range(8):
            e(f"v_cvt_pk_bf16_f32 v{T+40+i}, v{ACC+2*i}, v{ACC+2*i+1}")
        for q in range(4):
            e(f"buffer_store_dwordx2 {vr(T+40+2*q,2)}, v16, s[12:15], s52 offen offset:{16*q}")

def gen_gemm(name, kind):
    c = CFG[kind]; e = Em()
    kernel_head(e, name)
    prologue(e, name, kind, c)
    loader(e, name, kind, c)
    e(f"{name}_compute:")
    compute_addr(e, kind, c)
    if c['t'] == 1:
        e(f"v_mov_b32 v{V_SUM}, 0\nv_mov_b32 v{V_SQ}, 0\nv_mov_b32 v{V_CS}, 0")
        if kind == 'ffn1':
            e("s_mov_b32 s56, 0xc0135761\ns_mov_b32 s57, 0xbdd2d3e8")
            e("v_lshlrev_b32 v17, 3, v12")
            for fb in range(2):
                e(f"s_lshl_b32 s29, s26, 2\ns_add_u32 s29, s29, s{48+fb}\ns_lshl_b32 s29, s29, 6")
                for q in range(4):
                    e(f"buffer_load_dwordx2 {vr(AUX+8*fb+2*q,2)}, v17, s[16:19], s29 offen offset:{16*q}")
            main_loop(e, kind, c, False)
            e("s_waitcnt vmcnt(0)")
            epi_t1(e, kind, False)
        else:
            e("s_cmp_ge_u32 s26, 8")
            e(f"s_cbranch_scc1 {name}_v")
            e("s_cmp_lt_u32 s26, 4\ns_cselect_b32 s54, 0x3e8b97f6, 1.0")
            main_loop(e, kind, c, False)
            epi_t1(e, kind, False)
            e("s_endpgm")
            e(f"{name}_v:")
            main_loop(e, kind, c, True)
            epi_t1(e, kind, True)
    else:
        pre_t2(e, kind)
        main_loop(e, kind, c, False)
        epi_t2(e, kind)
    e(f"{name}_end:")
    e("s_endpgm")
    return e.text()
```

```python
import sys
from common import *
from gemm import gen_gemm
from attn import gen_attn
from t2 import gen_t2
src = open('sequential_preLN__mha_block__dense_activation_gelu__prompt.s.ref').read().split("\n")
hdr = [l for l in src if l.startswith(";") and "offset" in l.split("shape")[0] or l.startswith("; Kernarg")]
K = [(MAIN, 'qkv', 192, 133120), ("attn_kernel", 'attn', 256, 135424), ("wo_kernel", 'wo', 224, 131584),
     ("ffn1_kernel", 'ffn1', 224, 133120), ("ffn2_kernel", 'ffn2', 224, 131072)]
nk = int(sys.argv[2]) if len(sys.argv) > 2 else len(K)
out = "\n".join(hdr) + "\n"
for n, k, g, lds in K[:nk]:
    out += f"; @launch kernel={n} grid=({g},1,1) block=(512,1,1) lds={lds}\n"
out += '.amdgcn_target "amdgcn-amd-amdhsa--gfx950"\n.text\n'
for n, k, g, lds in K[:nk]:
    out += gen_attn(n) if k == 'attn' else gen_t2(n, k) if k in ('wo','ffn2') else gen_gemm(n, k)
out += '.section .rodata,"a"\n'
for n, k, g, lds in K[:nk]:
    out += kernel_desc(n)
open(sys.argv[1], "w").write(out)
print(len(out), "bytes")
```

```python
from common import *

Q, O, S, P, KV = 32, 64, 128, 160, 176
MX = 224
RED = 0
XCH = 131072
FLAG = XCH + 4096

def kv(kb): return KV + 16*(kb % 3)

def load_kv(e, kb):
    b = kv(kb)
    e(f"s_add_u32 s30, s42, {kb*2048}")
    e(f"buffer_load_dwordx4 {vr(b,4)}, v1, s[4:7], s30 offen")
    e(f"buffer_load_dwordx4 {vr(b+4,4)}, v1, s[4:7], s30 offen offset:1024")
    e(f"s_add_u32 s30, s30, {2*MB}")
    e(f"buffer_load_dwordx4 {vr(b+8,4)}, v1, s[4:7], s30 offen")
    e(f"buffer_load_dwordx4 {vr(b+12,4)}, v1, s[4:7], s30 offen offset:1024")

def mfma(d, a, b, c):
    return f"v_mfma_f32_32x32x16_bf16 {vr(d,16)}, {vr(a,4)}, {vr(b,4)}, {c}"

def main_pass(e, sub, st=None):
    load_kv(e, 0); load_kv(e, 1)
    for r in range(64): e(f"v_mov_b32 v{O+r}, 0")
    def qk(n):
        kb, qb = n >> 2, n & 3; s = S + 16*(n & 1)
        return [mfma(s, kv(kb), Q+8*qb, "0"), mfma(s, kv(kb)+4, Q+8*qb+4, vr(s,16))]
    def pv(n):
        kb, qb = n >> 2, n & 3; p = P + 8*(n & 1); o = O + 16*qb
        return [mfma(o, kv(kb)+8, p, vr(o,16)), mfma(o, kv(kb)+12, p+4, vr(o,16))]
    def valu(n):
        s = S + 16*(n & 1); p = P + 8*(n & 1); qb = n & 3; g = []
        for k in range(4):
            x = []
            if sub: x += [f"v_sub_f32 v{s+4*k+i}, v{s+4*k+i}, v{MX+qb}" for i in range(4)]
            x += [f"v_exp_f32 v{s+4*k+i}, v{s+4*k+i}" for i in range(4)]
            x += [f"v_cvt_pk_bf16_f32 v{p+2*k+i}, v{s+4*k+2*i}, v{s+4*k+2*i+1}" for i in range(2)]
            g.append(x)
        return g
    e("s_waitcnt vmcnt(4)")
    if st: st()
    for x in qk(0): e(x)
    e("s_nop 7\ns_nop 3")
    for n in range(32):
        if (n+1) % 4 == 0 and n+1 < 32:
            e(f"s_waitcnt vmcnt({4 if (n+1)//4 < 7 else 0})")
        m = (qk(n+1) if n+1 < 32 else [None, None]) + (pv(n-1) if n else [None, None])
        g = valu(n)
        for k in range(4):
            if m[k]: e(m[k])
            for x in g[k]: e(x)
        if n % 4 == 1 and n//4 + 2 < 8:
            load_kv(e, n//4 + 2)
    e("s_nop 1")
    for x in pv(31): e(x)

def reduce_store(e, name):
    e("s_lshl_b32 s29, s24, 14\nv_add_u32 v2, s29, v1\ns_nop 7")
    for qb in range(4):
        for q in range(4):
            e(f"ds_write_b128 v2, {vr(O+16*qb+4*q,4)} offset:{qb*4096+q*1024}")
    e("s_waitcnt lgkmcnt(0)\ns_barrier")
    e("s_lshr_b32 s48, s24, 1\ns_and_b32 s49, s24, 1")
    e("s_lshl_b32 s29, s48, 12\ns_lshl_b32 s30, s49, 11\ns_add_u32 s30, s30, s29\nv_add_u32 v2, s30, v1")
    e("v_add_u32 v3, 0x10000, v2")
    e("v_and_b32 v4, 31, v0\nv_lshlrev_b32 v4, 4, v4\ns_add_u32 s29, s29, 3584\nv_add_u32 v4, s29, v4\nv_add_u32 v5, 0x10000, v4")
    for w in range(8):
        for q in range(2):
            e(f"ds_read_b128 {vr(O+8*w+4*q,4)}, v{2+(w>>2)} offset:{(w&3)*16384+q*1024}")
        e(f"ds_read_b32 v{S+w}, v{4+(w>>2)} offset:{(w&3)*16384}")
        if w == 3: e("s_waitcnt lgkmcnt(6)")
    e("s_waitcnt lgkmcnt(0)")
    for st in (4, 2, 1):
        for w in range(st):
            for r in range(0, 8, 2):
                e(f"v_pk_add_f32 {vr(O+8*w+r,2)}, {vr(O+8*w+r,2)}, {vr(O+8*(w+st)+r,2)}")
            e(f"v_add_f32 v{S+w}, v{S+w}, v{S+w+st}")
    e(f"v_rcp_f32 v{S+1}, v{S}")
    e(f"v_cmp_le_f32 vcc, 0x21800000, v{S}\nv_cmp_ge_f32 s[50:51], s44, v{S}")
    for r in range(8):
        e(f"v_mul_f32 v{O+r}, v{O+r}, v{S+1}")
    e("s_and_b64 s[50:51], s[50:51], vcc")
    e("s_cmp_eq_u32 s49, 1\ns_cselect_b64 s[52:53], s[46:47], 0")
    for r in range(4, 8):
        e(f"v_cndmask_b32 v{O+r}, v{O+r}, 0, s[52:53]")
    for i in range(4):
        e(f"v_cvt_pk_bf16_f32 v{P+i}, v{O+2*i}, v{O+2*i+1}")
    e("s_lshl_b32 s29, s26, 2\ns_add_u32 s29, s29, s48\ns_lshl_b32 s29, s29, 5")
    e("s_lshl_b32 s30, s25, 1\ns_add_u32 s29, s29, s30\ns_add_u32 s29, s29, s49\ns_lshl_b32 s29, s29, 10")
    e(f"buffer_store_dwordx4 {vr(P,4)}, v1, s[8:11], s29 offen")

def gen_attn(name):
    e = Em()
    kernel_head(e, name)
    st = Stamp(e, 12); st()
    e(f"s_cmp_ge_u32 s2, 256\ns_cbranch_scc1 {name}_end")
    load_ptr(e, 34, 'ws')
    e("v_lshrrev_b32 v1, 6, v0\nv_and_b32 v0, 63, v0\ns_nop 0\nv_readfirstlane_b32 s24, v1")
    e("s_and_b32 s27, s2, 7\ns_lshr_b32 s28, s2, 3\ns_and_b32 s25, s28, 1\ns_lshl_b32 s27, s27, 1")
    e("s_add_u32 s25, s25, s27\ns_lshr_b32 s26, s28, 1")
    e("s_mov_b32 s46, 0\ns_mov_b32 s47, -1\ns_mov_b32 s44, 0x5d800000\ns_mov_b32 s45, 0")
    e("v_lshlrev_b32 v1, 4, v0")
    e("s_waitcnt lgkmcnt(0)")
    srd(e, 4, 34, 6*MB, WS_Q); srd(e, 8, 34, 2*MB, WS_O)
    e("s_lshl_b32 s29, s25, 6\ns_lshl_b32 s30, s26, 2\ns_add_u32 s30, s30, s29\ns_lshl_b32 s43, s30, 11")
    e(f"s_lshl_b32 s30, s24, 3\ns_add_u32 s30, s30, s29\ns_lshl_b32 s42, s30, 11\ns_add_u32 s42, s42, {WS_K}")
    for qb in range(4):
        for s in range(2):
            e(f"s_add_u32 s30, s43, {qb*2048}")
            e(f"buffer_load_dwordx4 {vr(Q+8*qb+4*s,4)}, v1, s[4:7], s30 offen offset:{s*1024}")
    e(f"v_mov_b32 v2, {FLAG}\nv_mov_b32 v3, 0\nds_write_b32 v2, v3")
    main_pass(e, False, st)
    st()
    e(f"{name}_reduce:")
    reduce_store(e, name)
    st.flush(name, 'a')
    e(f"s_cmp_eq_u32 s45, 1\ns_cbranch_scc1 {name}_end")
    e(f"v_mov_b32 v2, {FLAG}\nv_mov_b32 v3, 1")
    e(f"s_cmp_eq_u64 s[50:51], -1\ns_cbranch_scc1 {name}_ok\nds_write_b32 v2, v3\n{name}_ok:")
    e("s_waitcnt lgkmcnt(0)\ns_barrier\nds_read_b32 v3, v2\ns_waitcnt lgkmcnt(0)\ns_nop 0")
    e(f"v_readfirstlane_b32 s29, v3\ns_nop 3\ns_cmp_eq_u32 s29, 0\ns_cbranch_scc1 {name}_end")
    e("s_mov_b32 s45, 1\ns_waitcnt vmcnt(0)")
    for qb in range(4): e(f"v_mov_b32 v{MX+qb}, 0xff800000")
    e("s_mov_b32 s48, 0")
    e(f"{name}_mx:")
    e("s_lshl_b32 s30, s48, 11\ns_add_u32 s30, s30, s42")
    e(f"buffer_load_dwordx4 {vr(KV,4)}, v1, s[4:7], s30 offen")
    e(f"buffer_load_dwordx4 {vr(KV+4,4)}, v1, s[4:7], s30 offen offset:1024")
    e("s_waitcnt vmcnt(0)")
    for qb in range(4):
        e(mfma(S, KV, Q+8*qb, "0")); e(mfma(S, KV+4, Q+8*qb+4, vr(S,16)))
        e("s_nop 7\ns_nop 7")
        for r in range(0, 16, 2):
            e(f"v_max3_f32 v{MX+qb}, v{MX+qb}, v{S+r}, v{S+r+1}")
        e("s_nop 7")
    e(f"s_add_u32 s48, s48, 1\ns_cmp_lt_u32 s48, 8\ns_cbranch_scc1 {name}_mx")
    e(f"s_lshl_b32 s29, s24, 9\ns_add_u32 s29, s29, {XCH}\nv_and_b32 v4, 31, v0\nv_lshlrev_b32 v4, 2, v4\nv_add_u32 v2, s29, v4")
    for qb in range(4):
        swap_add(e, MX+qb, 3, "v_max_f32")
        e(f"ds_write_b32 v2, v{MX+qb} offset:{qb*128}")
    e(f"s_waitcnt lgkmcnt(0)\ns_barrier\nv_add_u32 v2, {XCH}, v4")
    for qb in range(4):
        for w in range(8):
            e(f"ds_read_b32 v{S+w}, v2 offset:{w*512+qb*128}")
        e("s_waitcnt lgkmcnt(0)")
        e(f"v_max3_f32 v{MX+qb}, v{S}, v{S+1}, v{S+2}\nv_max3_f32 v{MX+qb}, v{MX+qb}, v{S+3}, v{S+4}")
        e(f"v_max3_f32 v{MX+qb}, v{MX+qb}, v{S+5}, v{S+6}\nv_max_f32 v{MX+qb}, v{MX+qb}, v{S+7}")
    main_pass(e, True)
    e(f"s_branch {name}_reduce")
    e(f"{name}_end:")
    e("s_endpgm")
    return e.text()
```

```python
MAIN = "sequential_preLN__mha_block__dense_activation_gelu__prompt_kernel"
MB = 1 << 20
WS_Q, WS_K, WS_V, WS_O, WS_H, WS_G = 0, 2*MB, 4*MB, 6*MB, 8*MB, 10*MB
ARG = dict(x=0, wqkv=8, wo=16, w1=32, b1=40, w2=48, b2=56, out=64, dbg=72, ws=80)

class Em:
    def __init__(self):
        self.l = []
    def __call__(self, s):
        for x in s.split("\n"):
            x = x.strip()
            if x:
                self.l.append(x if x.endswith(":") else "    " + x)
    def text(self):
        return "\n".join(self.l) + "\n"

def vr(b, n=1):
    return f"v{b}" if n == 1 else f"v[{b}:{b+n-1}]"
def sr(b, n=1):
    return f"s{b}" if n == 1 else f"s[{b}:{b+n-1}]"

def kernel_head(e, name):
    e.l.append(f".globl {name}\n.p2align 8\n.type {name},@function")
    e(f"{name}:")

def kernel_desc(name, vgpr=256):
    acc = (vgpr + 3) // 4 * 4
    return f""".p2align 6
.amdhsa_kernel {name}
  .amdhsa_next_free_vgpr {vgpr}
  .amdhsa_next_free_sgpr 96
  .amdhsa_accum_offset {acc}
  .amdhsa_group_segment_fixed_size 0
  .amdhsa_kernarg_size 88
  .amdhsa_user_sgpr_count 2
  .amdhsa_user_sgpr_kernarg_segment_ptr 1
  .amdhsa_system_sgpr_workgroup_id_x 1
.end_amdhsa_kernel
"""

def load_ptr(e, sdst, arg):
    e(f"s_load_dwordx2 {sr(sdst,2)}, s[0:1], {ARG[arg]}")

def srd(e, d, pbase, nbytes, off=0):
    if off:
        e(f"s_add_u32 s{d}, s{pbase}, {off}")
        e(f"s_addc_u32 s{d+1}, s{pbase+1}, 0")
    else:
        e(f"s_mov_b32 s{d}, s{pbase}")
        e(f"s_mov_b32 s{d+1}, s{pbase+1}")
    e(f"s_mov_b32 s{d+2}, {nbytes}")
    e(f"s_mov_b32 s{d+3}, 0x00020000")

def swap_add(e, v, t, op="v_add_f32"):
    e(f"v_mov_b32 v{t}, v{v}")
    e("s_nop 1")
    e(f"v_permlane32_swap_b32 v{v}, v{t}")
    e("s_nop 1")
    e(f"{op} v{v}, v{v}, v{t}")

def unpack_bf16(e, dst, src, n):
    for i in range(n):
        e(f"v_and_b32 v{dst+2*i+1}, 0xffff0000, v{src+i}")
        e(f"v_lshlrev_b32 v{dst+2*i}, 16, v{src+i}")

import os
PROF = int(os.environ.get("PROF", "0"))
PWG = int(os.environ.get("PWG", "0"))
MT = "s_memrealtime" if PROF == 2 else "s_memtime"
class Stamp:
    def __init__(self, e, base): self.e, self.base, self.n = e, base, 0
    def __call__(self):
        if PROF:
            self.e(f"{MT} s[{60+2*self.n}:{61+2*self.n}]"); self.n += 1
    def flush(self, name, tag):
        if not PROF: return
        e = self.e
        e(f"s_waitcnt vmcnt(0) lgkmcnt(0)\n{MT} s[{60+2*self.n}:{61+2*self.n}]"); self.n += 1
        e(f"s_cmp_lg_u32 s2, {PWG}\ns_cbranch_scc1 {name}_nf{tag}")
        e(f"s_and_b32 s29, s24, 3\ns_cmp_lg_u32 s29, 0\ns_cbranch_scc1 {name}_nf{tag}")
        e("s_load_dwordx2 s[80:81], s[0:1], 72\ns_waitcnt lgkmcnt(0)\ns_mov_b32 s82, 256\ns_mov_b32 s83, 0x20000")
        for i in range(1, self.n):
            e(f"s_sub_u32 s29, s{60+2*i}, s60\nv_mov_b32 v1, s29\nv_mov_b32 v2, {4*(self.base+i)}")
            e("buffer_store_dword v1, v2, s[80:83], 0 offen")
        e(f"s_waitcnt vmcnt(0)\n{name}_nf{tag}:")
```

```python
from common import *
import os

SLOT = 32768
STAT = 131072
ONES = 45
FR, ACC = 32, 64
V_SUM, V_SQ, V_CS = 128, 129, 130
AUX = 132
T = 148

CFG = {
 'qkv':  dict(t=1, nwg=192, nc=7,  wbytes=448*1344*2, wstride=2688, wcol=224, wrows=64),
 'ffn1': dict(t=1, nwg=224, nc=7,  wbytes=448*1792*2, wstride=3584, wcol=256, wrows=64),
 'wo':   dict(t=2, nwg=224, nc=4,  wbytes=448*448*2,  wstride=896,  wcol=128, wrows=112, ns=32),
 'ffn2': dict(t=2, nwg=224, nc=14, wbytes=1792*448*2, wstride=896,  wcol=128, wrows=128, ns=112),
}

def acc(fb, tb): return ACC + 16*(2*fb+tb)

def prologue(e, name, kind, c):
    e(f"s_cmp_ge_u32 s2, {c['nwg']}")
    e(f"s_cbranch_scc1 {name}_end")
    warg = dict(qkv='wqkv', ffn1='w1', wo='wo', ffn2='w2')[kind]
    load_ptr(e, 32, warg); load_ptr(e, 34, 'ws'); load_ptr(e, 36, 'x'); load_ptr(e, 40, 'out')
    load_ptr(e, 38, 'b1' if kind == 'ffn1' else 'b2')
    e("v_lshrrev_b32 v1, 6, v0")
    e("v_and_b32 v0, 63, v0")
    e("s_and_b32 s27, s2, 7")
    e("v_readfirstlane_b32 s24, v1")
    e("s_lshr_b32 s28, s2, 3")
    if c['t'] == 1:
        e("s_and_b32 s25, s27, 3\ns_lshl_b32 s25, s25, 2\ns_and_b32 s29, s28, 3\ns_add_u32 s25, s25, s29")
        e("s_lshr_b32 s26, s27, 2")
        e(f"s_mul_i32 s26, s26, {6 if kind == 'qkv' else 7}")
        e("s_lshr_b32 s29, s28, 2\ns_add_u32 s26, s26, s29")
    else:
        e("s_lshl_b32 s25, s27, 2\ns_and_b32 s29, s28, 3\ns_add_u32 s25, s25, s29\ns_lshr_b32 s26, s28, 2")
    e(f"s_mov_b32 s{ONES}, 0x3f803f80")
    e("s_mov_b32 s46, 0\ns_mov_b32 s47, -1")
    e("s_waitcnt lgkmcnt(0)")
    srd(e, 4, 32, c['wbytes'])
    if kind == 'qkv':
        srd(e, 8, 36, 2048*896); srd(e, 12, 34, 6*MB, WS_Q)
    elif kind == 'ffn1':
        srd(e, 8, 34, 64*28*1024, WS_H); srd(e, 12, 34, 64*112*1024, WS_G); srd(e, 16, 38, 1792*2)
    elif kind == 'wo':
        srd(e, 8, 34, 64*32*1024, WS_O); srd(e, 12, 34, 64*28*1024, WS_H); srd(e, 20, 36, 2048*896)
    else:
        srd(e, 8, 34, 64*112*1024, WS_G); srd(e, 12, 40, 2048*896); srd(e, 16, 38, 896)
        srd(e, 20, 34, 64*28*1024, WS_H)
    e("s_cmp_lt_u32 s24, 4")
    e(f"s_cbranch_scc1 {name}_compute")

def loader(e, name, kind, c, st):
    ws, nc = c['wstride'], c['nc']
    e("s_sub_u32 s24, s24, 4")
    e("s_lshl_b32 s44, s24, 12")
    if c['t'] == 1:
        e("v_lshrrev_b32 v2, 4, v0\nv_and_b32 v3, 15, v0\nv_lshlrev_b32 v4, 2, v2\nv_xor_b32 v3, v3, v4")
        wrpi = 4
    else:
        e("v_lshrrev_b32 v2, 3, v0\nv_and_b32 v3, 7, v0\nv_lshrrev_b32 v4, 4, v0\nv_and_b32 v4, 1, v4")
        e("v_lshlrev_b32 v4, 2, v4\nv_xor_b32 v3, v3, v4")
        wrpi = 8
    e(f"s_mov_b32 s30, {ws}\nv_mul_lo_u32 v2, v2, s30\nv_lshl_add_u32 v10, v3, 4, v2")
    e(f"s_mul_i32 s42, s24, {4*wrpi*ws}\ns_mul_i32 s30, s26, {c['wcol']}\ns_add_u32 s42, s42, s30")
    if kind == 'qkv':
        e("v_lshrrev_b32 v2, 3, v0\nv_and_b32 v3, 7, v0\nv_lshrrev_b32 v4, 4, v0\nv_xor_b32 v3, v3, v4")
        e("s_mov_b32 s30, 896\nv_mul_lo_u32 v2, v2, s30\nv_lshl_add_u32 v11, v3, 4, v2")
        e("v_xor_b32 v3, 4, v3\nv_lshl_add_u32 v12, v3, 4, v2")
        e("s_lshl_b32 s43, s25, 7\ns_lshl_b32 s30, s24, 5\ns_add_u32 s43, s43, s30\ns_mul_i32 s43, s43, 896")
        aoff = lambda ch, i: ch*128 + i*8*896
        areg = lambda i: 11 + (i & 1)
    else:
        e("v_lshlrev_b32 v11, 4, v0")
        areg = lambda i: 11
        if kind == 'ffn1':
            e("s_lshl_b32 s43, s25, 2\ns_add_u32 s43, s43, s24\ns_mul_i32 s43, s43, 28672")
            aoff = lambda ch, i: (4*ch + i)*1024
        else:
            ns = c['ns']
            e(f"s_lshl_b32 s43, s25, 1\ns_lshr_b32 s30, s24, 1\ns_add_u32 s43, s43, s30\ns_mul_i32 s43, s43, {ns*1024}")
            e("s_and_b32 s30, s24, 1\ns_lshl_b32 s30, s30, 12\ns_add_u32 s43, s43, s30")
            aoff = lambda ch, i: (8*ch + i)*1024
    def issue(ch):
        so = (ch % 4)*SLOT
        for i in range(4):
            e(f"s_add_u32 m0, s44, {so + i*1024}")
            e(f"s_add_u32 s30, s42, {(c['wrows']*ch + wrpi*i)*ws}")
            e("buffer_load_dwordx4 v10, s[4:7], s30 offen lds")
            e(f"s_add_u32 m0, s44, {so + 16384 + i*1024}")
            e(f"s_add_u32 s30, s43, {aoff(ch, i)}")
            e(f"buffer_load_dwordx4 v{areg(i)}, s[8:11], s30 offen lds")
    issued = 2
    for ch in range(issued): issue(ch)
    st()
    for ch in range(nc):
        e(f"s_waitcnt vmcnt({8*(issued-ch-1)})")
        if ch in (0, 1, nc-1): st()
        e("s_barrier")
        while issued < min(nc, ch+4 if ch >= 1 else 3):
            issue(issued); issued += 1
    e("s_sub_u32 s24, s24, 4") if False else None
    st.flush(name, 'l')
    e("s_endpgm")

def compute_addr(e, kind, c):
    e("v_lshrrev_b32 v10, 4, v0\nv_and_b32 v11, 1, v10\nv_lshrrev_b32 v12, 5, v0")
    e("v_bfe_u32 v13, v0, 2, 2\nv_and_b32 v14, 3, v0")
    e("v_and_b32 v15, 31, v0")
    if c['t'] == 1:
        e("s_and_b32 s30, s24, 1\ns_lshr_b32 s31, s24, 1")
        e("s_lshl_b32 s29, s31, 1\ns_add_u32 s48, s29, s30\ns_add_u32 s49, s29, 1\ns_sub_u32 s49, s49, s30")
        e("s_lshl_b32 s29, s30, 1\ns_add_u32 s50, s29, s31\ns_add_u32 s51, s29, 1\ns_sub_u32 s51, s51, s31")
        hrows = 8 if kind == 'qkv' else 4
        cb = 56 if kind == 'qkv' else 64
        e(f"v_mul_u32_u24 v16, {hrows}, v12\nv_add_u32 v16, v16, v13\nv_lshlrev_b32 v16, 8, v16")
        e("v_lshlrev_b32 v17, 5, v11\nv_lshl_add_u32 v17, v14, 3, v17\nv_lshlrev_b32 v18, 2, v13")
        for k, sfb in ((2, 48), (4, 49)):
            e(f"s_mul_i32 s29, s{sfb}, {cb}\nv_add_u32 v19, s29, v17")
            e("v_lshrrev_b32 v20, 4, v19\nv_xor_b32 v20, v20, v18\nv_and_b32 v19, 8, v19")
            e(f"v_lshl_add_u32 v19, v20, 4, v19\nv_add_u32 v{k}, v19, v16\nv_add_u32 v{k+1}, 0x10000, v{k}")
        if kind == 'qkv':
            e("v_bfe_u32 v19, v15, 1, 3\nv_xor_b32 v19, v19, v12\nv_lshlrev_b32 v19, 4, v19\nv_lshl_add_u32 v19, v15, 7, v19")
        else:
            e("v_lshlrev_b32 v19, 4, v0")
        for k, stb in ((6, 50), (8, 51)):
            e(f"s_lshl_b32 s29, s{stb}, 12\nv_add_u32 v{k}, s29, v19\nv_add_u32 v{k+1}, 0x10000, v{k}")
    else:
        wr = 28 if kind == 'wo' else 32
        e(f"s_mul_i32 s29, s24, {wr}\nv_lshl_add_u32 v16, v12, 2, v13\nv_add_u32 v16, s29, v16\nv_lshlrev_b32 v16, 7, v16")
        e("v_lshrrev_b32 v17, 1, v14\nv_lshl_add_u32 v17, v11, 1, v17")
        e("v_lshrrev_b32 v18, 1, v13\nv_lshlrev_b32 v18, 2, v18")
        e("v_and_b32 v19, 1, v14\nv_lshlrev_b32 v19, 3, v19\nv_add_u32 v16, v16, v19")
        for k, fb in ((2, 0), (4, 1)):
            e(f"v_add_u32 v20, {4*fb}, v17\nv_xor_b32 v20, v20, v18\nv_lshl_add_u32 v{k}, v20, 4, v16\nv_add_u32 v{k+1}, 0x10000, v{k}")
        e("s_lshl_b32 s29, s24, 11\nv_lshlrev_b32 v19, 4, v0\nv_add_u32 v6, s29, v19\nv_add_u32 v7, 0x10000, v6")
        e("v_add_u32 v8, 0x2000, v6\nv_add_u32 v9, 0x10000, v8")

def main_loop(e, kind, c, vform, st):
    t1 = c['t'] == 1
    spc = 4 if t1 else 2
    steps = [(ch, s) for ch in range(c['nc']) for s in range(spc)]
    def reads(n):
        ch, s = steps[n]; slot = ch % 4; hi = slot >> 1; so = (slot & 1)*SLOT; p = FR + 16*(n & 1)
        r = []
        astep = 4096 if t1 else 2048
        a2 = (1024 if kind == 'qkv' else 2048) if t1 else 1024
        for k, reg in ((0, 2), (1, 4)):
            o = so + s*astep
            r.append(f"ds_read_b64_tr_b16 {vr(p+4*k,2)}, v{reg+hi} offset:{o}")
            r.append(f"ds_read_b64_tr_b16 {vr(p+4*k+2,2)}, v{reg+hi} offset:{o+a2}")
        for k, reg in ((0, 6), (1, 8)):
            if kind == 'qkv':
                r.append(f"v_xor_b32 v{22+k}, {s << 5}, v{reg+hi}\nds_read_b128 {vr(p+8+4*k,4)}, v{22+k} offset:{so+16384}")
            else:
                r.append(f"ds_read_b128 {vr(p+8+4*k,4)}, v{reg+hi} offset:{so+16384+s*1024}")
        return r
    def mf(n, fb, tb):
        p = FR + 16*(n & 1); a, b = vr(p+4*fb, 4), vr(p+8+4*tb, 4)
        if vform: a, b = b, a
        d = vr(acc(fb, tb), 16)
        return f"v_mfma_f32_32x32x16_bf16 {d}, {a}, {b}, {'0' if n == 0 else d}"
    st()
    e("s_barrier")
    st()
    for x in reads(0): e(x)
    for n in range(len(steps)):
        p = FR + 16*(n & 1)
        e("s_waitcnt lgkmcnt(0)")
        nxt = reads(n+1) if n+1 < len(steps) else []
        if nxt and steps[n+1][0] != steps[n][0]:
            e("s_barrier")
        fill = []
        if t1 and not int(os.environ.get('NOFILL','0')):
            fill = [f"v_dot2c_f32_bf16 v{V_SUM}, s{ONES}, v{p+8+i}" for i in range(4)]
            fill += [f"v_dot2c_f32_bf16 v{V_SQ}, v{p+8+i}, v{p+8+i}" for i in range(4)]
            fill += [f"v_dot2c_f32_bf16 v{V_CS}, s{ONES}, v{p+i}" for i in range(4)]
        e(mf(n, 0, 0))
        for x in nxt[:3]: e(x)
        e(mf(n, 0, 1))
        for x in nxt[3:]: e(x)
        for x in fill[:4]: e(x)
        e(mf(n, 1, 0))
        for x in fill[4:8]: e(x)
        e(mf(n, 1, 1))
        for x in fill[8:]: e(x)
    st()

def store_fa(e, src, voff, soff, srdn=12):
    for i in range(8):
        e(f"v_cvt_pk_bf16_f32 v{T+40+i}, v{src+2*i}, v{src+2*i+1}")
    e(f"buffer_store_dwordx4 {vr(T+40,4)}, v{voff}, s[{srdn}:{srdn+3}], s{soff} offen")
    e(f"buffer_store_dwordx4 {vr(T+44,4)}, v{voff}, s[{srdn}:{srdn+3}], s{soff} offen offset:1024")

def stats_to_lds(e):
    e("s_nop 3")
    for v in (V_SUM, V_SQ, V_CS): swap_add(e, v, T)
    e(f"s_mov_b32 s29, {1.0/448!r}") if False else None
    e("s_mov_b32 s29, 0x3b124925")
    e(f"v_mul_f32 v{V_SUM}, s29, v{V_SUM}\nv_mul_f32 v{V_SQ}, s29, v{V_SQ}")
    e(f"v_fma_f32 v{V_SQ}, -v{V_SUM}, v{V_SUM}, v{V_SQ}\nv_max_f32 v{V_SQ}, 0, v{V_SQ}")
    e(f"v_add_f32 v{V_SQ}, 0x3727c5ac, v{V_SQ}\nv_rsq_f32 v{V_SQ}, v{V_SQ}\ns_nop 0")
    e(f"v_mul_f32 v{V_SUM}, v{V_SUM}, v{V_SQ}")
    e(f"s_lshl_b32 s29, s50, 7\ns_add_u32 s29, s29, {STAT}\nv_lshlrev_b32 v16, 2, v15\nv_add_u32 v17, s29, v16")
    e(f"ds_write_b32 v17, v{V_SQ}\nds_write_b32 v17, v{V_SUM} offset:512")
    e(f"s_lshl_b32 s29, s48, 7\ns_add_u32 s29, s29, {STAT}\nv_add_u32 v17, s29, v16")
    e(f"ds_write_b32 v17, v{V_CS} offset:1024")
    e("s_waitcnt lgkmcnt(0)\ns_barrier")

def epi_t1(e, kind, vform):
    stats_to_lds(e)
    e("v_lshlrev_b32 v18, 4, v12\nv_lshlrev_b32 v24, 4, v0")
    for fb in range(2):
        for tb in range(2):
            a = acc(fb, tb); sfb, stb = 48+fb, 50+tb
            lane_s, reg_s = (sfb, stb) if vform else (stb, sfb)
            e(f"s_lshl_b32 s29, s{lane_s}, 7\ns_add_u32 s29, s29, {STAT}\nv_add_u32 v17, s29, v16")
            e(f"s_lshl_b32 s29, s{reg_s}, 7\ns_add_u32 s29, s29, {STAT}\nv_add_u32 v19, s29, v18")
            if vform:
                e(f"ds_read_b32 v{T}, v17 offset:1024")
                for q in range(4):
                    e(f"ds_read_b128 {vr(T+4+4*q,4)}, v19 offset:{32*q}")
                    e(f"ds_read_b128 {vr(T+20+4*q,4)}, v19 offset:{512+32*q}")
                e("s_waitcnt lgkmcnt(0)")
                for r in range(16):
                    e(f"v_mul_f32 v{T+20+r}, v{T}, v{T+20+r}")
                    e(f"v_fma_f32 v{a+r}, v{a+r}, v{T+4+r}, -v{T+20+r}")
                e("v_cmp_gt_u32 vcc, 28, v15\nv_cmp_eq_u32 s[52:53], 28, v15\ns_nop 1")
                e(f"v_cndmask_b32 v{T+1}, 0, 1.0, s[52:53]")
                for r in range(16):
                    e(f"v_cndmask_b32 v{a+r}, v{T+1}, v{a+r}, vcc")
            else:
                e(f"ds_read_b32 v{T}, v17\nds_read_b32 v{T+1}, v17 offset:512")
                for q in range(4):
                    e(f"ds_read_b128 {vr(T+4+4*q,4)}, v19 offset:{1024+32*q}")
                e("s_waitcnt lgkmcnt(0)")
                if kind == 'qkv':
                    e(f"v_mul_f32 v{T}, s54, v{T}\nv_mul_f32 v{T+1}, s54, v{T+1}")
                    for r in range(16):
                        e(f"v_mul_f32 v{T+4+r}, v{T+1}, v{T+4+r}")
                        e(f"v_fma_f32 v{a+r}, v{a+r}, v{T}, -v{T+4+r}")
                    for r in range(12, 16):
                        e(f"v_cndmask_b32 v{a+r}, v{a+r}, 0, s[46:47]")
                else:
                    bb = AUX + 8*fb
                    unpack_bf16(e, T+20, bb, 8)
                    for r in range(0, 16, 2):
                        x = vr(a+r, 2); cs = vr(T+4+r, 2); b = vr(T+20+r, 2); u = vr(T+36, 2); w = vr(T+38, 2)
                        e(f"v_pk_fma_f32 {b}, {cs}, {vr(T,2)}, {b} op_sel:[0,1,0] op_sel_hi:[1,1,1] neg_lo:[1,0,0] neg_hi:[1,0,0]")
                        e(f"v_pk_fma_f32 {x}, {x}, {vr(T,2)}, {b} op_sel_hi:[1,0,1]")
                        e(f"v_pk_mul_f32 {u}, {x}, {x}")
                        e(f"v_pk_fma_f32 {u}, {u}, s[56:57], s[56:57] op_sel:[0,1,0] op_sel_hi:[1,1,0]")
                        e(f"v_pk_mul_f32 {u}, {u}, {x}")
                        e(f"v_exp_f32 v{T+38}, v{T+36}\nv_exp_f32 v{T+39}, v{T+37}\ns_nop 0")
                        e(f"v_pk_add_f32 {w}, {w}, 1.0 op_sel_hi:[1,0]")
                        e(f"v_rcp_f32 v{T+38}, v{T+38}\nv_rcp_f32 v{T+39}, v{T+39}\ns_nop 0")
                        e(f"v_pk_mul_f32 {x}, {x}, {w}")
            if kind == 'qkv':
                e(f"s_lshl_b32 s29, s26, 2\ns_add_u32 s29, s29, s{sfb}\ns_lshl_b32 s29, s29, 6")
                e(f"s_lshl_b32 s30, s25, 2\ns_add_u32 s29, s29, s30\ns_add_u32 s29, s29, s{stb}\ns_lshl_b32 s55, s29, 11")
            else:
                e(f"s_lshl_b32 s29, s25, 2\ns_add_u32 s29, s29, s{stb}\ns_mul_i32 s29, s29, 112")
                e(f"s_lshl_b32 s30, s26, 2\ns_add_u32 s30, s30, s{sfb}\ns_lshl_b32 s30, s30, 1\ns_add_u32 s29, s29, s30\ns_lshl_b32 s55, s29, 10")
            store_fa(e, a, 24, 55)

def pre_t2(e, kind):
    e("s_lshr_b32 s48, s24, 1\ns_and_b32 s50, s24, 1")
    e("s_lshl_b32 s29, s25, 1\ns_add_u32 s51, s29, s50")
    e("s_lshl_b32 s29, s26, 1\ns_add_u32 s49, s29, s48")
    e("s_lshl_b32 s29, s51, 5\nv_add_u32 v16, s29, v15\ns_mov_b32 s29, 896\nv_mul_lo_u32 v16, v16, s29")
    e("v_lshl_add_u32 v16, v12, 3, v16\ns_lshl_b32 s52, s49, 6")
    e("v_lshlrev_b32 v24, 4, v0")
    e("s_mul_i32 s29, s51, 28\ns_lshl_b32 s30, s49, 1\ns_add_u32 s29, s29, s30\ns_lshl_b32 s55, s29, 10")
    if kind == 'wo':
        for q in range(4):
            e(f"buffer_load_dwordx2 {vr(AUX+2*q,2)}, v16, s[20:23], s52 offen offset:{16*q}")
    else:
        e(f"buffer_load_dwordx4 {vr(AUX,4)}, v24, s[20:23], s55 offen")
        e(f"buffer_load_dwordx4 {vr(AUX+4,4)}, v24, s[20:23], s55 offen offset:1024")
        e("v_lshlrev_b32 v17, 3, v12")
        for q in range(4):
            e(f"buffer_load_dwordx2 {vr(AUX+8+2*q,2)}, v17, s[16:19], s52 offen offset:{16*q}")

def epi_t2(e, kind):
    e("s_barrier")
    e("s_lshl_b32 s29, s24, 14\nv_add_u32 v17, s29, v24\ns_nop 7")
    for b in range(4):
        for q in range(4):
            e(f"ds_write_b128 v17, {vr(ACC+16*b+4*q,4)} offset:{b*4096+q*1024}")
    e("s_waitcnt lgkmcnt(0)\ns_barrier")
    e("s_lshl_b32 s29, s48, 1\ns_add_u32 s29, s29, s50\ns_lshl_b32 s29, s29, 12\nv_add_u32 v17, s29, v24")
    for w in range(4):
        for q in range(4):
            e(f"ds_read_b128 {vr(ACC+16*w+4*q,4)}, v17 offset:{w*16384+q*1024}")
    e("s_waitcnt vmcnt(0)")
    unpack_bf16(e, T, AUX, 8)
    if kind == 'ffn2':
        unpack_bf16(e, T+16, AUX+8, 8)
        for r in range(0, 16, 2):
            e(f"v_pk_add_f32 {vr(T+r,2)}, {vr(T+r,2)}, {vr(T+16+r,2)}")
    e("s_waitcnt lgkmcnt(0)")
    for r in range(0, 16, 2):
        e(f"v_pk_add_f32 {vr(ACC+r,2)}, {vr(ACC+r,2)}, {vr(ACC+16+r,2)}")
        e(f"v_pk_add_f32 {vr(ACC+32+r,2)}, {vr(ACC+32+r,2)}, {vr(ACC+48+r,2)}")
        e(f"v_pk_add_f32 {vr(ACC+r,2)}, {vr(ACC+r,2)}, {vr(T+r,2)}")
        e(f"v_pk_add_f32 {vr(ACC+r,2)}, {vr(ACC+r,2)}, {vr(ACC+32+r,2)}")
    if kind == 'wo':
        store_fa(e, ACC, 24, 55)
    else:
        for i in range(8):
            e(f"v_cvt_pk_bf16_f32 v{T+40+i}, v{ACC+2*i}, v{ACC+2*i+1}")
        for q in range(4):
            e(f"buffer_store_dwordx2 {vr(T+40+2*q,2)}, v16, s[12:15], s52 offen offset:{16*q}")

def gen_gemm(name, kind):
    c = CFG[kind]; e = Em()
    kernel_head(e, name)
    base = dict(qkv=0, wo=24, ffn1=36, ffn2=48)[kind]
    s0 = Stamp(e, base); s0()
    prologue(e, name, kind, c)
    sl = Stamp(e, base+6); sl.n = 1
    loader(e, name, kind, c, sl)
    st = Stamp(e, base); st.n = 1
    e(f"{name}_compute:")
    compute_addr(e, kind, c)
    if c['t'] == 1:
        e(f"v_mov_b32 v{V_SUM}, 0\nv_mov_b32 v{V_SQ}, 0\nv_mov_b32 v{V_CS}, 0")
        if kind == 'ffn1':
            e("s_mov_b32 s56, 0xc0135761\ns_mov_b32 s57, 0xbdd2d3e8")
            e("v_lshlrev_b32 v17, 3, v12")
            for fb in range(2):
                e(f"s_lshl_b32 s29, s26, 2\ns_add_u32 s29, s29, s{48+fb}\ns_lshl_b32 s29, s29, 6")
                for q in range(4):
                    e(f"buffer_load_dwordx2 {vr(AUX+8*fb+2*q,2)}, v17, s[16:19], s29 offen offset:{16*q}")
            main_loop(e, kind, c, False, st)
            e("s_waitcnt vmcnt(0)")
            epi_t1(e, kind, False)
            st.flush(name, 'c')
        else:
            e("s_cmp_ge_u32 s26, 8")
            e(f"s_cbranch_scc1 {name}_v")
            e("s_cmp_lt_u32 s26, 4\ns_cselect_b32 s54, 0x3e8b97f6, 1.0")
            main_loop(e, kind, c, False, st)
            epi_t1(e, kind, False)
            st.flush(name, 'c')
            e("s_endpgm")
            e(f"{name}_v:")
            sv = Stamp(e, base); sv.n = 1
            main_loop(e, kind, c, True, sv)
            epi_t1(e, kind, True)
    else:
        pre_t2(e, kind)
        main_loop(e, kind, c, False, st)
        epi_t2(e, kind)
        st.flush(name, 'c')
    e(f"{name}_end:")
    e("s_endpgm")
    return e.text()
```

```python
from common import *

ACC, BR, AF_, AUX, T = 64, 128, 192, 208, 224
WS_STAT = 17*MB
LST = 131072

def gen_t2(name, kind):
    wo = kind == 'wo'
    nb, ns, wr = (2, 32, 28) if wo else (7, 112, 32)
    e = Em(); kernel_head(e, name)
    base = 24 if wo else 48
    st = Stamp(e, base); st()
    e(f"s_cmp_ge_u32 s2, 224\ns_cbranch_scc1 {name}_end")
    load_ptr(e, 32, 'wo' if wo else 'w2'); load_ptr(e, 34, 'ws')
    if wo: load_ptr(e, 36, 'x')
    else: load_ptr(e, 38, 'b2'); load_ptr(e, 40, 'out')
    e("v_lshrrev_b32 v1, 6, v0\nv_and_b32 v0, 63, v0\ns_and_b32 s27, s2, 7\nv_readfirstlane_b32 s24, v1")
    e("s_lshr_b32 s28, s2, 3\ns_lshl_b32 s25, s27, 2\ns_and_b32 s29, s28, 3\ns_add_u32 s25, s25, s29\ns_lshr_b32 s26, s28, 2")
    e("v_lshrrev_b32 v2, 3, v0\nv_and_b32 v3, 7, v0\nv_bfe_u32 v4, v0, 4, 1\nv_lshlrev_b32 v4, 2, v4\nv_xor_b32 v3, v3, v4")
    e("v_mul_u32_u24 v2, 896, v2\nv_lshl_add_u32 v10, v3, 4, v2\nv_lshlrev_b32 v11, 4, v0")
    e(f"s_mul_i32 s42, s24, {wr*896}\ns_lshl_b32 s30, s26, 7\ns_add_u32 s42, s42, s30")
    e(f"s_mul_i32 s43, s25, {2*ns*1024}\ns_lshl_b32 s30, s24, 11\ns_add_u32 s43, s43, s30\ns_lshl_b32 s44, s24, 14")
    e("s_waitcnt lgkmcnt(0)")
    srd(e, 4, 32, 448*896 if wo else 1792*896)
    srd(e, 8, 34, 64*ns*1024, WS_O if wo else WS_G)
    def issue(i):
        for j in range(4):
            e(f"s_add_u32 m0, s44, {(i%4)*4096 + j*1024}\ns_add_u32 s30, s42, {(8*wr*i + 8*j)*896}")
            e("buffer_load_dwordx4 v10, s[4:7], s30 offen lds")
        for sp in range(2):
            for tb in range(2):
                e(f"s_add_u32 s30, s43, {(tb*ns + 16*i + sp)*1024}")
                e(f"buffer_load_dwordx4 {vr(BR+16*(i%4)+8*sp+4*tb,4)}, v11, s[8:11], s30 offen")
    issued = min(nb, 4)
    for i in range(issued): issue(i)
    e("v_lshrrev_b32 v12, 5, v0\nv_and_b32 v15, 31, v0")
    e("s_lshr_b32 s48, s24, 2\ns_bfe_u32 s50, s24, 0x10001\ns_and_b32 s53, s24, 1")
    e("s_lshl_b32 s29, s25, 1\ns_add_u32 s51, s29, s50\ns_lshl_b32 s29, s26, 1\ns_add_u32 s49, s29, s48")
    e("s_lshl_b32 s29, s51, 5\nv_add_u32 v16, s29, v15\nv_mul_u32_u24 v16, 896, v16\nv_lshl_add_u32 v16, v12, 3, v16")
    e("s_lshl_b32 s52, s49, 6\ns_lshl_b32 s29, s53, 5\ns_add_u32 s52, s52, s29")
    e("s_mul_i32 s29, s51, 28\ns_lshl_b32 s30, s49, 1\ns_add_u32 s29, s29, s30\ns_add_u32 s29, s29, s53\ns_lshl_b32 s55, s29, 10")
    if wo:
        srd(e, 12, 34, 64*28*1024, WS_H); srd(e, 20, 36, 2048*896); srd(e, 16, 34, 7*2048*8, WS_STAT)
        for q in range(2):
            e(f"buffer_load_dwordx2 {vr(AUX+2*q,2)}, v16, s[20:23], s52 offen offset:{16*q}")
        e(f"v_mov_b32 v2, 0\nv_lshlrev_b32 v3, 2, v0\nv_add_u32 v3, {LST}, v3\nds_write_b32 v3, v2\nds_write_b32 v3, v2 offset:256")
        nx = 2
    else:
        srd(e, 12, 40, 2048*896); srd(e, 16, 38, 896); srd(e, 20, 34, 64*28*1024, WS_H)
        e(f"buffer_load_dwordx4 {vr(AUX,4)}, v11, s[20:23], s55 offen\nv_lshlrev_b32 v17, 3, v12")
        for q in range(2):
            e(f"buffer_load_dwordx2 {vr(AUX+4+2*q,2)}, v17, s[16:19], s52 offen offset:{16*q}")
        nx = 3
    e("v_bfe_u32 v13, v0, 2, 2\nv_and_b32 v14, 3, v0\nv_bfe_u32 v18, v0, 4, 1")
    e("v_lshl_add_u32 v19, v12, 2, v13\nv_lshlrev_b32 v19, 7, v19\nv_add_u32 v19, s44, v19")
    e("v_and_b32 v20, 1, v14\nv_lshl_add_u32 v19, v20, 3, v19\nv_lshrrev_b32 v20, 1, v14\nv_lshl_add_u32 v20, v18, 1, v20")
    e("v_lshrrev_b32 v21, 1, v13\nv_lshlrev_b32 v21, 2, v21")
    e("v_xor_b32 v22, v20, v21\nv_lshl_add_u32 v2, v22, 4, v19\nv_add_u32 v20, 4, v20\nv_xor_b32 v22, v20, v21\nv_lshl_add_u32 v4, v22, 4, v19")
    st()
    for i in range(nb):
        later = 8*(issued - i - 1) + (nx if issued <= 4 else 0)
        e(f"s_waitcnt vmcnt({later})")
        if i == 0: st()
        for sp in range(2):
            for fb in range(2):
                o = (i % 4)*4096 + sp*2048
                e(f"ds_read_b64_tr_b16 {vr(AF_+8*sp+4*fb,2)}, v{2+2*fb} offset:{o}")
                e(f"ds_read_b64_tr_b16 {vr(AF_+8*sp+4*fb+2,2)}, v{2+2*fb} offset:{o+1024}")
        for sp in range(2):
            e(f"s_waitcnt lgkmcnt({4 if sp == 0 else 0})")
            for fb in range(2):
                for tb in range(2):
                    d = vr(ACC+16*(2*fb+tb), 16)
                    e(f"v_mfma_f32_32x32x16_bf16 {d}, {vr(AF_+8*sp+4*fb,4)}, {vr(BR+16*(i%4)+8*sp+4*tb,4)}, {'0' if i == 0 and sp == 0 else d}")
        if issued < nb:
            issue(issued); issued += 1
    st()
    e("v_add_u32 v17, s44, v11\ns_nop 7")
    for b in range(4):
        for q in range(4):
            e(f"ds_write_b128 v17, {vr(ACC+16*b+4*q,4)} offset:{b*4096+q*1024}")
    e("s_waitcnt lgkmcnt(0)\ns_barrier")
    e("s_lshl_b32 s29, s24, 11\nv_add_u32 v17, s29, v11\nv_add_u32 v18, 0x10000, v17")
    for w in range(8):
        for q in range(2):
            e(f"ds_read_b128 {vr(ACC+8*w+4*q,4)}, v{17+(w>>2)} offset:{(w&3)*16384+q*1024}")
    e("s_waitcnt vmcnt(0)")
    if wo:
        unpack_bf16(e, T, AUX, 4)
    else:
        unpack_bf16(e, T, AUX, 4); unpack_bf16(e, T+8, AUX+4, 4)
        for r in range(0, 8, 2): e(f"v_pk_add_f32 {vr(T+r,2)}, {vr(T+r,2)}, {vr(T+8+r,2)}")
    e("s_waitcnt lgkmcnt(0)")
    for s_ in (4, 2, 1):
        for w in range(s_):
            for r in range(0, 8, 2):
                e(f"v_pk_add_f32 {vr(ACC+8*w+r,2)}, {vr(ACC+8*w+r,2)}, {vr(ACC+8*(w+s_)+r,2)}")
    for r in range(0, 8, 2): e(f"v_pk_add_f32 {vr(ACC+r,2)}, {vr(ACC+r,2)}, {vr(T+r,2)}")
    for i in range(4): e(f"v_cvt_pk_bf16_f32 v{T+16+i}, v{ACC+2*i}, v{ACC+2*i+1}")
    if wo:
        e(f"buffer_store_dwordx4 {vr(T+16,4)}, v11, s[12:15], s55 offen")
        unpack_bf16(e, ACC, T+16, 4)
        e(f"v_add_f32 v{T}, v{ACC}, v{ACC+1}\nv_mul_f32 v{T+1}, v{ACC}, v{ACC}\nv_fmac_f32 v{T+1}, v{ACC+1}, v{ACC+1}")
        for r in range(2, 8):
            e(f"v_add_f32 v{T}, v{T}, v{ACC+r}\nv_fmac_f32 v{T+1}, v{ACC+r}, v{ACC+r}")
        e(f"s_lshl_b32 s29, s50, 7\ns_add_u32 s29, s29, {LST}\nv_lshlrev_b32 v3, 2, v15\nv_add_u32 v3, s29, v3")
        e(f"ds_add_f32 v3, v{T}\nds_add_f32 v3, v{T+1} offset:256\ns_waitcnt lgkmcnt(0)\ns_barrier")
        e(f"s_cmp_lg_u32 s24, 0\ns_cbranch_scc1 {name}_done")
        e(f"v_lshlrev_b32 v3, 2, v0\nv_add_u32 v3, {LST}, v3\nds_read_b32 v4, v3\nds_read_b32 v5, v3 offset:256")
        e("s_lshl_b32 s29, s26, 11\ns_lshl_b32 s30, s25, 6\ns_add_u32 s29, s29, s30\ns_lshl_b32 s29, s29, 3\nv_lshlrev_b32 v3, 3, v0")
        e("s_waitcnt lgkmcnt(0)\nbuffer_store_dwordx2 v[4:5], v3, s[16:19], s29 offen")
        e(f"{name}_done:")
    else:
        for q in range(2):
            e(f"buffer_store_dwordx2 {vr(T+16+2*q,2)}, v16, s[12:15], s52 offen offset:{16*q}")
    st.flush(name, 'c')
    e(f"{name}_end:\ns_endpgm")
    return e.text()
```

```python
from common import *
import os
from t1b import gen_side

SLOT = 32768
STAT = 131072
ONES = 45
FR, ACC = 32, 64
V_SUM, V_SQ, V_CS = 128, 129, 130
AUX = 132
T = 148

CFG = {
 'qkv':  dict(t=1, nwg=192, nc=7,  wbytes=448*1344*2, wstride=2688, wcol=224, wrows=64),
 'ffn1': dict(t=1, nwg=224, nc=7,  wbytes=448*1792*2, wstride=3584, wcol=256, wrows=64),
 'wo':   dict(t=2, nwg=224, nc=4,  wbytes=448*448*2,  wstride=896,  wcol=128, wrows=112, ns=32),
 'ffn2': dict(t=2, nwg=224, nc=14, wbytes=1792*448*2, wstride=896,  wcol=128, wrows=128, ns=112),
}

def acc(fb, tb): return ACC + 16*(2*fb+tb)

def prologue(e, name, kind, c):
    e(f"s_cmp_ge_u32 s2, {c['nwg']}")
    e(f"s_cbranch_scc1 {name}_side" if kind == 'qkv' else f"s_cbranch_scc1 {name}_end")
    warg = dict(qkv='wqkv', ffn1='w1', wo='wo', ffn2='w2')[kind]
    load_ptr(e, 32, warg); load_ptr(e, 34, 'ws'); load_ptr(e, 36, 'x'); load_ptr(e, 40, 'out')
    load_ptr(e, 38, 'b1' if kind == 'ffn1' else 'b2')
    e("v_lshrrev_b32 v1, 6, v0")
    e("v_and_b32 v0, 63, v0")
    e("s_and_b32 s27, s2, 7")
    e("v_readfirstlane_b32 s24, v1")
    e("s_lshr_b32 s28, s2, 3")
    if c['t'] == 1:
        e("s_and_b32 s25, s27, 3\ns_lshl_b32 s25, s25, 2\ns_and_b32 s29, s28, 3\ns_add_u32 s25, s25, s29")
        e("s_lshr_b32 s26, s27, 2")
        e(f"s_mul_i32 s26, s26, {6 if kind == 'qkv' else 7}")
        e("s_lshr_b32 s29, s28, 2\ns_add_u32 s26, s26, s29")
    else:
        e("s_lshl_b32 s25, s27, 2\ns_and_b32 s29, s28, 3\ns_add_u32 s25, s25, s29\ns_lshr_b32 s26, s28, 2")
    e(f"s_mov_b32 s{ONES}, 0x3f803f80")
    e("s_mov_b32 s46, 0\ns_mov_b32 s47, -1")
    e("s_waitcnt lgkmcnt(0)")
    srd(e, 4, 32, c['wbytes'])
    if kind == 'qkv':
        srd(e, 8, 36, 2048*896); srd(e, 12, 34, 6*MB, WS_Q)
    elif kind == 'ffn1':
        srd(e, 8, 34, 64*28*1024, WS_H); srd(e, 12, 34, 64*112*1024, WS_G); srd(e, 16, 38, 1792*2)
    elif kind == 'wo':
        srd(e, 8, 34, 64*32*1024, WS_O); srd(e, 12, 34, 64*28*1024, WS_H); srd(e, 20, 36, 2048*896)
    else:
        srd(e, 8, 34, 64*112*1024, WS_G); srd(e, 12, 40, 2048*896); srd(e, 16, 38, 896)
        srd(e, 20, 34, 64*28*1024, WS_H)
    e("s_cmp_lt_u32 s24, 4")
    e(f"s_cbranch_scc1 {name}_compute")

def loader(e, name, kind, c, st):
    ws, nc = c['wstride'], c['nc']
    e("s_sub_u32 s24, s24, 4")
    e("s_lshl_b32 s44, s24, 12")
    if c['t'] == 1:
        e("v_lshrrev_b32 v2, 4, v0\nv_and_b32 v3, 15, v0\nv_lshlrev_b32 v4, 2, v2\nv_xor_b32 v3, v3, v4")
        wrpi = 4
    else:
        e("v_lshrrev_b32 v2, 3, v0\nv_and_b32 v3, 7, v0\nv_lshrrev_b32 v4, 4, v0\nv_and_b32 v4, 1, v4")
        e("v_lshlrev_b32 v4, 2, v4\nv_xor_b32 v3, v3, v4")
        wrpi = 8
    e(f"s_mov_b32 s30, {ws}\nv_mul_lo_u32 v2, v2, s30\nv_lshl_add_u32 v10, v3, 4, v2")
    e(f"s_mul_i32 s42, s24, {4*wrpi*ws}\ns_mul_i32 s30, s26, {c['wcol']}\ns_add_u32 s42, s42, s30")
    if kind == 'qkv':
        e("v_lshrrev_b32 v2, 3, v0\nv_and_b32 v3, 7, v0\nv_lshrrev_b32 v4, 4, v0\nv_xor_b32 v3, v3, v4")
        e("s_mov_b32 s30, 896\nv_mul_lo_u32 v2, v2, s30\nv_lshl_add_u32 v11, v3, 4, v2")
        e("v_xor_b32 v3, 4, v3\nv_lshl_add_u32 v12, v3, 4, v2")
        e("s_lshl_b32 s43, s25, 7\ns_lshl_b32 s30, s24, 5\ns_add_u32 s43, s43, s30\ns_mul_i32 s43, s43, 896")
        aoff = lambda ch, i: ch*128 + i*8*896
        areg = lambda i: 11 + (i & 1)
    else:
        e("v_lshlrev_b32 v11, 4, v0")
        areg = lambda i: 11
        if kind == 'ffn1':
            e("s_lshl_b32 s43, s25, 2\ns_add_u32 s43, s43, s24\ns_mul_i32 s43, s43, 28672")
            aoff = lambda ch, i: (4*ch + i)*1024
        else:
            ns = c['ns']
            e(f"s_lshl_b32 s43, s25, 1\ns_lshr_b32 s30, s24, 1\ns_add_u32 s43, s43, s30\ns_mul_i32 s43, s43, {ns*1024}")
            e("s_and_b32 s30, s24, 1\ns_lshl_b32 s30, s30, 12\ns_add_u32 s43, s43, s30")
            aoff = lambda ch, i: (8*ch + i)*1024
    def issue(ch):
        so = (ch % 4)*SLOT
        for i in range(4):
            e(f"s_add_u32 m0, s44, {so + i*1024}")
            e(f"s_add_u32 s30, s42, {(c['wrows']*ch + wrpi*i)*ws}")
            e("buffer_load_dwordx4 v10, s[4:7], s30 offen lds")
            e(f"s_add_u32 m0, s44, {so + 16384 + i*1024}")
            e(f"s_add_u32 s30, s43, {aoff(ch, i)}")
            e(f"buffer_load_dwordx4 v{areg(i)}, s[8:11], s30 offen lds")
    issued = 2
    for ch in range(issued): issue(ch)
    st()
    for ch in range(nc):
        e(f"s_waitcnt vmcnt({8*(issued-ch-1)})")
        if ch in (0, 1, nc-1): st()
        e("s_barrier")
        while issued < min(nc, ch+4 if ch >= 1 else 3):
            issue(issued); issued += 1
    e("s_sub_u32 s24, s24, 4") if False else None
    st.flush(name, 'l')
    e("s_endpgm")

def compute_addr(e, kind, c):
    e("v_lshrrev_b32 v10, 4, v0\nv_and_b32 v11, 1, v10\nv_lshrrev_b32 v12, 5, v0")
    e("v_bfe_u32 v13, v0, 2, 2\nv_and_b32 v14, 3, v0")
    e("v_and_b32 v15, 31, v0")
    if c['t'] == 1:
        e("s_and_b32 s30, s24, 1\ns_lshr_b32 s31, s24, 1")
        e("s_lshl_b32 s29, s31, 1\ns_add_u32 s48, s29, s30\ns_add_u32 s49, s29, 1\ns_sub_u32 s49, s49, s30")
        e("s_lshl_b32 s29, s30, 1\ns_add_u32 s50, s29, s31\ns_add_u32 s51, s29, 1\ns_sub_u32 s51, s51, s31")
        hrows = 8 if kind == 'qkv' else 4
        cb = 56 if kind == 'qkv' else 64
        e(f"v_mul_u32_u24 v16, {hrows}, v12\nv_add_u32 v16, v16, v13\nv_lshlrev_b32 v16, 8, v16")
        e("v_lshlrev_b32 v17, 5, v11\nv_lshl_add_u32 v17, v14, 3, v17\nv_lshlrev_b32 v18, 2, v13")
        for k, sfb in ((2, 48), (4, 49)):
            e(f"s_mul_i32 s29, s{sfb}, {cb}\nv_add_u32 v19, s29, v17")
            e("v_lshrrev_b32 v20, 4, v19\nv_xor_b32 v20, v20, v18\nv_and_b32 v19, 8, v19")
            e(f"v_lshl_add_u32 v19, v20, 4, v19\nv_add_u32 v{k}, v19, v16\nv_add_u32 v{k+1}, 0x10000, v{k}")
        if kind == 'qkv':
            e("v_bfe_u32 v19, v15, 1, 3\nv_xor_b32 v19, v19, v12\nv_lshlrev_b32 v19, 4, v19\nv_lshl_add_u32 v19, v15, 7, v19")
        else:
            e("v_lshlrev_b32 v19, 4, v0")
        for k, stb in ((6, 50), (8, 51)):
            e(f"s_lshl_b32 s29, s{stb}, 12\nv_add_u32 v{k}, s29, v19\nv_add_u32 v{k+1}, 0x10000, v{k}")
    else:
        wr = 28 if kind == 'wo' else 32
        e(f"s_mul_i32 s29, s24, {wr}\nv_lshl_add_u32 v16, v12, 2, v13\nv_add_u32 v16, s29, v16\nv_lshlrev_b32 v16, 7, v16")
        e("v_lshrrev_b32 v17, 1, v14\nv_lshl_add_u32 v17, v11, 1, v17")
        e("v_lshrrev_b32 v18, 1, v13\nv_lshlrev_b32 v18, 2, v18")
        e("v_and_b32 v19, 1, v14\nv_lshlrev_b32 v19, 3, v19\nv_add_u32 v16, v16, v19")
        for k, fb in ((2, 0), (4, 1)):
            e(f"v_add_u32 v20, {4*fb}, v17\nv_xor_b32 v20, v20, v18\nv_lshl_add_u32 v{k}, v20, 4, v16\nv_add_u32 v{k+1}, 0x10000, v{k}")
        e("s_lshl_b32 s29, s24, 11\nv_lshlrev_b32 v19, 4, v0\nv_add_u32 v6, s29, v19\nv_add_u32 v7, 0x10000, v6")
        e("v_add_u32 v8, 0x2000, v6\nv_add_u32 v9, 0x10000, v8")

def main_loop(e, kind, c, vform, st):
    t1 = c['t'] == 1
    spc = 4 if t1 else 2
    steps = [(ch, s) for ch in range(c['nc']) for s in range(spc)]
    def reads(n):
        ch, s = steps[n]; slot = ch % 4; hi = slot >> 1; so = (slot & 1)*SLOT; p = FR + 16*(n & 1)
        r = []
        astep = 4096 if t1 else 2048
        a2 = (1024 if kind == 'qkv' else 2048) if t1 else 1024
        for k, reg in ((0, 2), (1, 4)):
            o = so + s*astep
            r.append(f"ds_read_b64_tr_b16 {vr(p+4*k,2)}, v{reg+hi} offset:{o}")
            r.append(f"ds_read_b64_tr_b16 {vr(p+4*k+2,2)}, v{reg+hi} offset:{o+a2}")
        for k, reg in ((0, 6), (1, 8)):
            if kind == 'qkv':
                r.append(f"v_xor_b32 v{22+k}, {s << 5}, v{reg+hi}\nds_read_b128 {vr(p+8+4*k,4)}, v{22+k} offset:{so+16384}")
            else:
                r.append(f"ds_read_b128 {vr(p+8+4*k,4)}, v{reg+hi} offset:{so+16384+s*1024}")
        return r
    def mf(n, fb, tb):
        p = FR + 16*(n & 1); a, b = vr(p+4*fb, 4), vr(p+8+4*tb, 4)
        if vform: a, b = b, a
        d = vr(acc(fb, tb), 16)
        return f"v_mfma_f32_32x32x16_bf16 {d}, {a}, {b}, {'0' if n == 0 else d}"
    st()
    e("s_barrier")
    st()
    for x in reads(0): e(x)
    for n in range(len(steps)):
        p = FR + 16*(n & 1)
        e("s_waitcnt lgkmcnt(0)")
        nxt = reads(n+1) if n+1 < len(steps) else []
        if nxt and steps[n+1][0] != steps[n][0]:
            e("s_barrier")
        fill = []
        if t1 and not int(os.environ.get('NOFILL','0')):
            fill = [f"v_dot2c_f32_bf16 v{V_SUM}, s{ONES}, v{p+8+i}" for i in range(4)]
            fill += [f"v_dot2c_f32_bf16 v{V_SQ}, v{p+8+i}, v{p+8+i}" for i in range(4)]
            fill += [f"v_dot2c_f32_bf16 v{V_CS}, s{ONES}, v{p+i}" for i in range(4)]
        e(mf(n, 0, 0))
        for x in nxt[:3]: e(x)
        e(mf(n, 0, 1))
        for x in nxt[3:]: e(x)
        for x in fill[:4]: e(x)
        e(mf(n, 1, 0))
        for x in fill[4:8]: e(x)
        e(mf(n, 1, 1))
        for x in fill[8:]: e(x)
    st()

def store_fa(e, src, voff, soff, srdn=12):
    for i in range(8):
        e(f"v_cvt_pk_bf16_f32 v{T+40+i}, v{src+2*i}, v{src+2*i+1}")
    e(f"buffer_store_dwordx4 {vr(T+40,4)}, v{voff}, s[{srdn}:{srdn+3}], s{soff} offen")
    e(f"buffer_store_dwordx4 {vr(T+44,4)}, v{voff}, s[{srdn}:{srdn+3}], s{soff} offen offset:1024")

def stats_to_lds(e):
    e("s_nop 3")
    for v in (V_SUM, V_SQ, V_CS): swap_add(e, v, T)
    e(f"s_mov_b32 s29, {1.0/448!r}") if False else None
    e("s_mov_b32 s29, 0x3b124925")
    e(f"v_mul_f32 v{V_SUM}, s29, v{V_SUM}\nv_mul_f32 v{V_SQ}, s29, v{V_SQ}")
    e(f"v_fma_f32 v{V_SQ}, -v{V_SUM}, v{V_SUM}, v{V_SQ}\nv_max_f32 v{V_SQ}, 0, v{V_SQ}")
    e(f"v_add_f32 v{V_SQ}, 0x3727c5ac, v{V_SQ}\nv_rsq_f32 v{V_SQ}, v{V_SQ}\ns_nop 0")
    e(f"v_mul_f32 v{V_SUM}, v{V_SUM}, v{V_SQ}")
    e(f"s_lshl_b32 s29, s50, 7\ns_add_u32 s29, s29, {STAT}\nv_lshlrev_b32 v16, 2, v15\nv_add_u32 v17, s29, v16")
    e(f"ds_write_b32 v17, v{V_SQ}\nds_write_b32 v17, v{V_SUM} offset:512")
    e(f"s_lshl_b32 s29, s48, 7\ns_add_u32 s29, s29, {STAT}\nv_add_u32 v17, s29, v16")
    e(f"ds_write_b32 v17, v{V_CS} offset:1024")
    e("s_waitcnt lgkmcnt(0)\ns_barrier")

def epi_t1(e, kind, vform):
    stats_to_lds(e)
    e("v_lshlrev_b32 v18, 4, v12\nv_lshlrev_b32 v24, 4, v0")
    for fb in range(2):
        for tb in range(2):
            a = acc(fb, tb); sfb, stb = 48+fb, 50+tb
            lane_s, reg_s = (sfb, stb) if vform else (stb, sfb)
            e(f"s_lshl_b32 s29, s{lane_s}, 7\ns_add_u32 s29, s29, {STAT}\nv_add_u32 v17, s29, v16")
            e(f"s_lshl_b32 s29, s{reg_s}, 7\ns_add_u32 s29, s29, {STAT}\nv_add_u32 v19, s29, v18")
            if vform:
                e(f"ds_read_b32 v{T}, v17 offset:1024")
                for q in range(4):
                    e(f"ds_read_b128 {vr(T+4+4*q,4)}, v19 offset:{32*q}")
                    e(f"ds_read_b128 {vr(T+20+4*q,4)}, v19 offset:{512+32*q}")
                e("s_waitcnt lgkmcnt(0)")
                for r in range(16):
                    e(f"v_mul_f32 v{T+20+r}, v{T}, v{T+20+r}")
                    e(f"v_fma_f32 v{a+r}, v{a+r}, v{T+4+r}, -v{T+20+r}")
                e("v_cmp_gt_u32 vcc, 28, v15\nv_cmp_eq_u32 s[52:53], 28, v15\ns_nop 1")
                e(f"v_cndmask_b32 v{T+1}, 0, 1.0, s[52:53]")
                for r in range(16):
                    e(f"v_cndmask_b32 v{a+r}, v{T+1}, v{a+r}, vcc")
            else:
                e(f"ds_read_b32 v{T}, v17\nds_read_b32 v{T+1}, v17 offset:512")
                for q in range(4):
                    e(f"ds_read_b128 {vr(T+4+4*q,4)}, v19 offset:{1024+32*q}")
                e("s_waitcnt lgkmcnt(0)")
                if kind == 'qkv':
                    e(f"v_mul_f32 v{T}, s54, v{T}\nv_mul_f32 v{T+1}, s54, v{T+1}")
                    for r in range(16):
                        e(f"v_mul_f32 v{T+4+r}, v{T+1}, v{T+4+r}")
                        e(f"v_fma_f32 v{a+r}, v{a+r}, v{T}, -v{T+4+r}")
                    for r in range(12, 16):
                        e(f"v_cndmask_b32 v{a+r}, v{a+r}, 0, s[46:47]")
                else:
                    bb = AUX + 8*fb
                    unpack_bf16(e, T+20, bb, 8)
                    for r in range(0, 16, 2):
                        x = vr(a+r, 2); cs = vr(T+4+r, 2); b = vr(T+20+r, 2); u = vr(T+36, 2); w = vr(T+38, 2)
                        e(f"v_pk_fma_f32 {b}, {cs}, {vr(T,2)}, {b} op_sel:[0,1,0] op_sel_hi:[1,1,1] neg_lo:[1,0,0] neg_hi:[1,0,0]")
                        e(f"v_pk_fma_f32 {x}, {x}, {vr(T,2)}, {b} op_sel_hi:[1,0,1]")
                        e(f"v_pk_mul_f32 {u}, {x}, {x}")
                        e(f"v_pk_fma_f32 {u}, {u}, s[56:57], s[56:57] op_sel:[0,1,0] op_sel_hi:[1,1,0]")
                        e(f"v_pk_mul_f32 {u}, {u}, {x}")
                        e(f"v_exp_f32 v{T+38}, v{T+36}\nv_exp_f32 v{T+39}, v{T+37}\ns_nop 0")
                        e(f"v_pk_add_f32 {w}, {w}, 1.0 op_sel_hi:[1,0]")
                        e(f"v_rcp_f32 v{T+38}, v{T+38}\nv_rcp_f32 v{T+39}, v{T+39}\ns_nop 0")
                        e(f"v_pk_mul_f32 {x}, {x}, {w}")
            if kind == 'qkv':
                e(f"s_lshl_b32 s29, s26, 2\ns_add_u32 s29, s29, s{sfb}\ns_lshl_b32 s29, s29, 6")
                e(f"s_lshl_b32 s30, s25, 2\ns_add_u32 s29, s29, s30\ns_add_u32 s29, s29, s{stb}\ns_lshl_b32 s55, s29, 11")
            else:
                e(f"s_lshl_b32 s29, s25, 2\ns_add_u32 s29, s29, s{stb}\ns_mul_i32 s29, s29, 112")
                e(f"s_lshl_b32 s30, s26, 2\ns_add_u32 s30, s30, s{sfb}\ns_lshl_b32 s30, s30, 1\ns_add_u32 s29, s29, s30\ns_lshl_b32 s55, s29, 10")
            store_fa(e, a, 24, 55)

def pre_t2(e, kind):
    e("s_lshr_b32 s48, s24, 1\ns_and_b32 s50, s24, 1")
    e("s_lshl_b32 s29, s25, 1\ns_add_u32 s51, s29, s50")
    e("s_lshl_b32 s29, s26, 1\ns_add_u32 s49, s29, s48")
    e("s_lshl_b32 s29, s51, 5\nv_add_u32 v16, s29, v15\ns_mov_b32 s29, 896\nv_mul_lo_u32 v16, v16, s29")
    e("v_lshl_add_u32 v16, v12, 3, v16\ns_lshl_b32 s52, s49, 6")
    e("v_lshlrev_b32 v24, 4, v0")
    e("s_mul_i32 s29, s51, 28\ns_lshl_b32 s30, s49, 1\ns_add_u32 s29, s29, s30\ns_lshl_b32 s55, s29, 10")
    if kind == 'wo':
        for q in range(4):
            e(f"buffer_load_dwordx2 {vr(AUX+2*q,2)}, v16, s[20:23], s52 offen offset:{16*q}")
    else:
        e(f"buffer_load_dwordx4 {vr(AUX,4)}, v24, s[20:23], s55 offen")
        e(f"buffer_load_dwordx4 {vr(AUX+4,4)}, v24, s[20:23], s55 offen offset:1024")
        e("v_lshlrev_b32 v17, 3, v12")
        for q in range(4):
            e(f"buffer_load_dwordx2 {vr(AUX+8+2*q,2)}, v17, s[16:19], s52 offen offset:{16*q}")

def epi_t2(e, kind):
    e("s_barrier")
    e("s_lshl_b32 s29, s24, 14\nv_add_u32 v17, s29, v24\ns_nop 7")
    for b in range(4):
        for q in range(4):
            e(f"ds_write_b128 v17, {vr(ACC+16*b+4*q,4)} offset:{b*4096+q*1024}")
    e("s_waitcnt lgkmcnt(0)\ns_barrier")
    e("s_lshl_b32 s29, s48, 1\ns_add_u32 s29, s29, s50\ns_lshl_b32 s29, s29, 12\nv_add_u32 v17, s29, v24")
    for w in range(4):
        for q in range(4):
            e(f"ds_read_b128 {vr(ACC+16*w+4*q,4)}, v17 offset:{w*16384+q*1024}")
    e("s_waitcnt vmcnt(0)")
    unpack_bf16(e, T, AUX, 8)
    if kind == 'ffn2':
        unpack_bf16(e, T+16, AUX+8, 8)
        for r in range(0, 16, 2):
            e(f"v_pk_add_f32 {vr(T+r,2)}, {vr(T+r,2)}, {vr(T+16+r,2)}")
    e("s_waitcnt lgkmcnt(0)")
    for r in range(0, 16, 2):
        e(f"v_pk_add_f32 {vr(ACC+r,2)}, {vr(ACC+r,2)}, {vr(ACC+16+r,2)}")
        e(f"v_pk_add_f32 {vr(ACC+32+r,2)}, {vr(ACC+32+r,2)}, {vr(ACC+48+r,2)}")
        e(f"v_pk_add_f32 {vr(ACC+r,2)}, {vr(ACC+r,2)}, {vr(T+r,2)}")
        e(f"v_pk_add_f32 {vr(ACC+r,2)}, {vr(ACC+r,2)}, {vr(ACC+32+r,2)}")
    if kind == 'wo':
        store_fa(e, ACC, 24, 55)
    else:
        for i in range(8):
            e(f"v_cvt_pk_bf16_f32 v{T+40+i}, v{ACC+2*i}, v{ACC+2*i+1}")
        for q in range(4):
            e(f"buffer_store_dwordx2 {vr(T+40+2*q,2)}, v16, s[12:15], s52 offen offset:{16*q}")

def gen_gemm(name, kind):
    c = CFG[kind]; e = Em()
    kernel_head(e, name)
    base = dict(qkv=0, wo=24, ffn1=36, ffn2=48)[kind]
    s0 = Stamp(e, base); s0()
    prologue(e, name, kind, c)
    sl = Stamp(e, base+6); sl.n = 1
    loader(e, name, kind, c, sl)
    st = Stamp(e, base); st.n = 1
    e(f"{name}_compute:")
    compute_addr(e, kind, c)
    if c['t'] == 1:
        e(f"v_mov_b32 v{V_SUM}, 0\nv_mov_b32 v{V_SQ}, 0\nv_mov_b32 v{V_CS}, 0")
        if kind == 'ffn1':
            e("s_mov_b32 s56, 0xc0135761\ns_mov_b32 s57, 0xbdd2d3e8")
            e("v_lshlrev_b32 v17, 3, v12")
            for fb in range(2):
                e(f"s_lshl_b32 s29, s26, 2\ns_add_u32 s29, s29, s{48+fb}\ns_lshl_b32 s29, s29, 6")
                for q in range(4):
                    e(f"buffer_load_dwordx2 {vr(AUX+8*fb+2*q,2)}, v17, s[16:19], s29 offen offset:{16*q}")
            main_loop(e, kind, c, False, st)
            e("s_waitcnt vmcnt(0)")
            epi_t1(e, kind, False)
            st.flush(name, 'c')
        else:
            e("s_cmp_ge_u32 s26, 8")
            e(f"s_cbranch_scc1 {name}_v")
            e("s_cmp_lt_u32 s26, 4\ns_cselect_b32 s54, 0x3e8b97f6, 1.0")
            main_loop(e, kind, c, False, st)
            epi_t1(e, kind, False)
            st.flush(name, 'c')
            e("s_endpgm")
            e(f"{name}_v:")
            sv = Stamp(e, base); sv.n = 1
            main_loop(e, kind, c, True, sv)
            epi_t1(e, kind, True)
            e("s_endpgm")
            gen_side(e, name)
    else:
        pre_t2(e, kind)
        main_loop(e, kind, c, False, st)
        epi_t2(e, kind)
        st.flush(name, 'c')
    e(f"{name}_end:")
    e("s_endpgm")
    return e.text()
```

```python
from common import *

A_, ACC, B_, ST_ = 32, 64, 128, 240
WS_STAT = 17*MB
WS_CS = 18*MB
CSL = 114688

def gen_ffn1(name):
    e = Em(); kernel_head(e, name)
    s0 = Stamp(e, 36); s0()
    e(f"s_cmp_ge_u32 s2, 224\ns_cbranch_scc1 {name}_end")
    load_ptr(e, 32, 'w1'); load_ptr(e, 34, 'ws')
    e("v_lshrrev_b32 v1, 6, v0\nv_and_b32 v0, 63, v0\ns_and_b32 s27, s2, 7\nv_readfirstlane_b32 s24, v1\ns_lshr_b32 s28, s2, 3")
    e("s_and_b32 s25, s27, 3\ns_lshl_b32 s25, s25, 2\ns_and_b32 s29, s28, 3\ns_add_u32 s25, s25, s29")
    e("s_lshr_b32 s26, s27, 2\ns_mul_i32 s26, s26, 7\ns_lshr_b32 s29, s28, 2\ns_add_u32 s26, s26, s29")
    e(f"s_cmp_lt_u32 s24, 4\ns_cbranch_scc1 {name}_compute")
    sl = Stamp(e, 42); sl.n = 1
    e("s_sub_u32 s24, s24, 4\ns_lshl_b32 s44, s24, 12")
    e("v_lshrrev_b32 v2, 4, v0\nv_and_b32 v3, 15, v0\nv_lshlrev_b32 v4, 2, v2\nv_xor_b32 v3, v3, v4")
    e("v_mul_u32_u24 v2, 3584, v2\nv_lshl_add_u32 v10, v3, 4, v2\nv_lshlrev_b32 v11, 2, v0")
    e(f"s_mul_i32 s42, s24, {16*3584}\ns_lshl_b32 s30, s26, 8\ns_add_u32 s42, s42, s30")
    e("s_and_b32 s30, s24, 1\ns_lshl_b32 s30, s30, 8\ns_lshr_b32 s31, s24, 1\ns_mul_i32 s43, s31, 7168\ns_add_u32 s43, s43, s30")
    e(f"s_lshl_b32 s30, s26, 9\ns_add_u32 s43, s43, s30\ns_lshl_b32 s45, s24, 8\ns_add_u32 s45, s45, {CSL}")
    e("s_waitcnt lgkmcnt(0)")
    srd(e, 4, 32, 448*3584); srd(e, 8, 34, 2*7168, WS_CS)
    e("s_mov_b32 m0, s45\ns_nop 0\nbuffer_load_dword v11, s[8:11], s43 offen lds")
    def issue(ch):
        for i in range(4):
            e(f"s_add_u32 m0, s44, {ch*16384 + i*1024}\ns_add_u32 s30, s42, {(64*ch + 4*i)*3584}")
            e("buffer_load_dwordx4 v10, s[4:7], s30 offen lds")
    issued = 2
    issue(0); issue(1)
    for ch in range(7):
        e(f"s_waitcnt vmcnt({4*(issued-ch-1)})")
        if ch in (0, 1, 6): sl()
        e("s_barrier")
        while issued < min(7, ch + 5):
            issue(issued); issued += 1
    sl.flush(name, 'l')
    e("s_endpgm")
    e(f"{name}_compute:")
    st = Stamp(e, 36); st.n = 1
    e("v_lshlrev_b32 v24, 4, v0\nv_and_b32 v15, 31, v0\nv_lshrrev_b32 v12, 5, v0")
    e("s_lshl_b32 s51, s25, 2\ns_add_u32 s51, s51, s24\ns_mul_i32 s43, s51, 28672\ns_lshl_b32 s42, s51, 8\nv_lshlrev_b32 v16, 3, v15")
    e("s_waitcnt lgkmcnt(0)")
    srd(e, 8, 34, 64*28*1024, WS_H); srd(e, 16, 34, 7*2048*8, WS_STAT); srd(e, 12, 34, 64*112*1024, WS_G)
    for n in range(28):
        if n % 4 == 0: e(f"s_add_u32 s30, s43, {n*1024}")
        e(f"buffer_load_dwordx4 {vr(B_+4*n,4)}, v24, s[8:11], s30 offen offset:{(n%4)*1024}")
        if n == 3:
            for c in range(7):
                e(f"s_add_u32 s31, s42, {c*16384}\nbuffer_load_dwordx2 {vr(ST_+2*c,2)}, v16, s[16:19], s31 offen")
    e("v_bfe_u32 v11, v0, 4, 1\nv_bfe_u32 v13, v0, 2, 2\nv_and_b32 v14, 3, v0")
    e("v_lshl_add_u32 v17, v12, 2, v13\nv_lshlrev_b32 v17, 8, v17\nv_and_b32 v18, 1, v14\nv_lshl_add_u32 v17, v18, 3, v17")
    e("v_lshrrev_b32 v18, 1, v14\nv_lshl_add_u32 v18, v11, 1, v18\nv_lshlrev_b32 v19, 2, v13")
    for fb in range(4):
        e(f"v_add_u32 v20, {4*fb}, v18\nv_xor_b32 v20, v20, v19\nv_lshl_add_u32 v{2+2*fb}, v20, 4, v17\nv_add_u32 v{3+2*fb}, 0x10000, v{2+2*fb}")
    def reads(n):
        ch, s = n >> 2, n & 3; o = ch*16384 + s*4096; hi = o >> 16; o &= 65535; p = A_ + 16*(n & 1); r = []
        for fb in range(4):
            r.append(f"ds_read_b64_tr_b16 {vr(p+4*fb,2)}, v{2+2*fb+hi} offset:{o}")
            r.append(f"ds_read_b64_tr_b16 {vr(p+4*fb+2,2)}, v{2+2*fb+hi} offset:{o+2048}")
        return r
    st()
    e("s_barrier")
    st()
    for x in reads(0): e(x)
    for n in range(28):
        p = A_ + 16*(n & 1)
        e(f"s_waitcnt vmcnt({min(27-n, 24) if n < 4 else 27-n}) lgkmcnt(0)")
        nxt = reads(n+1) if n < 27 else []
        if nxt and (n+1) % 4 == 0: e("s_barrier")
        for fb in range(4):
            d = vr(ACC+16*fb, 16)
            e(f"v_mfma_f32_32x32x16_bf16 {d}, {vr(p+4*fb,4)}, {vr(B_+4*n,4)}, {'0' if n == 0 else d}")
            if fb < 3:
                for x in nxt[3*fb:3*fb+3 if fb < 2 else 8]: e(x)
    st()
    for c in range(1, 7): e(f"v_pk_add_f32 {vr(ST_,2)}, {vr(ST_,2)}, {vr(ST_+2*c,2)}")
    R, M = ST_, ST_+1
    e(f"s_mov_b32 s29, 0x3b124925\nv_mul_f32 v{M}, s29, v{M}\nv_mul_f32 v{ST_+2}, s29, v{R}")
    e(f"v_fma_f32 v{R}, -v{ST_+2}, v{ST_+2}, v{M}\nv_max_f32 v{R}, 0, v{R}\nv_add_f32 v{R}, 0x3727c5ac, v{R}\nv_rsq_f32 v{R}, v{R}\ns_nop 0")
    e(f"v_mul_f32 v{M}, v{ST_+2}, v{R}")
    e("s_mov_b32 s56, 0xc0135761\ns_mov_b32 s57, 0xbdd2d3e8")
    e(f"v_lshlrev_b32 v18, 4, v12\nv_add_u32 v18, {CSL}, v18")
    CS, BI, U, W, PK = B_, B_+16, B_+32, B_+48, B_+64
    rm = vr(ST_, 2)
    for fb in range(4):
        a = ACC + 16*fb
        for q in range(4):
            e(f"ds_read_b128 {vr(CS+4*q,4)}, v18 offset:{fb*128+32*q}\nds_read_b128 {vr(BI+4*q,4)}, v18 offset:{512+fb*128+32*q}")
        e("s_waitcnt lgkmcnt(0)")
        P = lambda b, r: vr(b+r, 2)
        rs = range(0, 16, 2)
        for r in rs: e(f"v_pk_fma_f32 {P(BI,r)}, {P(CS,r)}, {rm}, {P(BI,r)} op_sel:[0,1,0] op_sel_hi:[1,1,1] neg_lo:[1,0,0] neg_hi:[1,0,0]")
        for r in rs: e(f"v_pk_fma_f32 {P(a,r)}, {P(a,r)}, {rm}, {P(BI,r)} op_sel_hi:[1,0,1]")
        for r in rs: e(f"v_pk_mul_f32 {P(U,r)}, {P(a,r)}, {P(a,r)}")
        for r in rs: e(f"v_pk_fma_f32 {P(U,r)}, {P(U,r)}, s[56:57], s[56:57] op_sel:[0,1,0] op_sel_hi:[1,1,0]")
        for r in rs: e(f"v_pk_mul_f32 {P(U,r)}, {P(U,r)}, {P(a,r)}")
        for r in range(16): e(f"v_exp_f32 v{W+r}, v{U+r}")
        for r in rs: e(f"v_pk_add_f32 {P(W,r)}, {P(W,r)}, 1.0 op_sel_hi:[1,0]")
        for r in range(16): e(f"v_rcp_f32 v{W+r}, v{W+r}")
        for r in rs: e(f"v_pk_mul_f32 {P(a,r)}, {P(a,r)}, {P(W,r)}")
        k = PK + 8*(fb & 1)
        for i in range(8): e(f"v_cvt_pk_bf16_f32 v{k+i}, v{a+2*i}, v{a+2*i+1}")
        e(f"s_mul_i32 s29, s51, 112\ns_lshl_b32 s30, s26, 3\ns_add_u32 s29, s29, s30\ns_add_u32 s29, s29, {2*fb}\ns_lshl_b32 s55, s29, 10")
        e(f"buffer_store_dwordx4 {vr(k,4)}, v24, s[12:15], s55 offen\nbuffer_store_dwordx4 {vr(k+4,4)}, v24, s[12:15], s55 offen offset:1024")
    st.flush(name, 'c')
    e(f"{name}_end:\ns_endpgm")
    return e.text()

def gen_side(e, name):
    e(f"{name}_side:")
    e(f"s_cmp_ge_u32 s2, 256\ns_cbranch_scc1 {name}_end")
    load_ptr(e, 32, 'w1'); load_ptr(e, 34, 'ws'); load_ptr(e, 36, 'b1'); load_ptr(e, 38, 'w2'); load_ptr(e, 40, 'wo')
    e("s_sub_u32 s25, s2, 192\nv_lshrrev_b32 v2, 3, v0\nv_and_b32 v3, 7, v0\ns_waitcnt lgkmcnt(0)")
    e(f"s_cmp_ge_u32 s25, 28\ns_cbranch_scc1 {name}_pf")
    srd(e, 4, 32, 448*3584); srd(e, 8, 34, 2*7168, WS_CS); srd(e, 12, 36, 3584)
    e("v_mul_u32_u24 v4, 3584, v2\nv_lshl_add_u32 v4, v3, 4, v4\ns_lshl_b32 s26, s25, 7")
    for i in range(7):
        e(f"s_add_u32 s30, s26, {64*i*3584}\nbuffer_load_dwordx4 {vr(32+4*i,4)}, v4, s[4:7], s30 offen")
    e("v_lshlrev_b32 v6, 1, v0\nbuffer_load_ushort v7, v6, s[12:15], s26 offen")
    for r in range(8): e(f"v_mov_b32 v{16+r}, 0")
    for i in range(7):
        e(f"s_waitcnt vmcnt({7-i})")
        unpack_bf16(e, 64, 32+4*i, 4)
        for r in range(0, 8, 2): e(f"v_pk_add_f32 {vr(16+r,2)}, {vr(16+r,2)}, {vr(64+r,2)}")
    e("v_lshlrev_b32 v5, 5, v0\nds_write_b128 v5, v[16:19]\nds_write_b128 v5, v[20:23] offset:16\ns_waitcnt lgkmcnt(0)\ns_barrier")
    e("v_and_b32 v8, 63, v0\nv_lshrrev_b32 v9, 6, v0\nv_lshlrev_b32 v5, 2, v8\nv_lshl_add_u32 v5, v9, 11, v5")
    for k in range(8): e(f"ds_read_b32 v{16+k}, v5 offset:{256*k}")
    e("s_waitcnt lgkmcnt(0)")
    for k in range(1, 8): e(f"v_add_f32 v16, v16, v{16+k}")
    e("s_barrier\nv_lshlrev_b32 v5, 2, v0\nds_write_b32 v5, v16\ns_waitcnt lgkmcnt(0)\ns_barrier")
    e(f"v_cmp_gt_u32 vcc, 64, v0\ns_and_saveexec_b64 s[50:51], vcc\ns_cbranch_execz {name}_end")
    for k in range(8): e(f"ds_read_b32 v{16+k}, v5 offset:{256*k}")
    e("s_waitcnt vmcnt(0) lgkmcnt(0)")
    for k in range(1, 8): e(f"v_add_f32 v16, v16, v{16+k}")
    e("v_lshlrev_b32 v7, 16, v7\ns_lshl_b32 s26, s25, 8\ns_add_u32 s30, s26, 7168")
    e("buffer_store_dword v16, v5, s[8:11], s26 offen\nbuffer_store_dword v7, v5, s[8:11], s30 offen\ns_endpgm")
    e(f"{name}_pf:")
    srd(e, 4, 38, 1792*896); srd(e, 8, 40, 448*896)
    e("s_sub_u32 s25, s25, 28\ns_mul_i32 s26, s25, 49152\nv_lshlrev_b32 v4, 4, v0")
    for i in range(6):
        e(f"s_add_u32 s30, s26, {8192*i}\nbuffer_load_dwordx4 {vr(32+4*i,4)}, v4, s[4:7], s30 offen")
    e("s_mul_i32 s26, s25, 16384")
    for i in range(2):
        e(f"s_add_u32 s30, s26, {8192*i}\nbuffer_load_dwordx4 {vr(56+4*i,4)}, v4, s[8:11], s30 offen")
    e("s_waitcnt vmcnt(0)\ns_endpgm")
```

```python
from common import *

ACC, BR, AF_, AUX, T = 64, 128, 192, 208, 224
WS_STAT = 17*MB
LST = 131072

def gen_t2(name, kind):
    wo = kind == 'wo'
    nb, ns, wr = (2, 32, 28) if wo else (7, 112, 32)
    e = Em(); kernel_head(e, name)
    base = 24 if wo else 48
    st = Stamp(e, base); st()
    e(f"s_cmp_ge_u32 s2, 224\ns_cbranch_scc1 {name}_end")
    load_ptr(e, 32, 'wo' if wo else 'w2'); load_ptr(e, 34, 'ws')
    if wo: load_ptr(e, 36, 'x')
    else: load_ptr(e, 38, 'b2'); load_ptr(e, 40, 'out')
    e("v_lshrrev_b32 v1, 6, v0\nv_and_b32 v0, 63, v0\ns_and_b32 s27, s2, 7\nv_readfirstlane_b32 s24, v1")
    e("s_lshr_b32 s28, s2, 3\ns_lshl_b32 s25, s27, 2\ns_and_b32 s29, s28, 3\ns_add_u32 s25, s25, s29\ns_lshr_b32 s26, s28, 2")
    e("v_lshrrev_b32 v2, 3, v0\nv_and_b32 v3, 7, v0\nv_bfe_u32 v4, v0, 4, 1\nv_lshlrev_b32 v4, 2, v4\nv_xor_b32 v3, v3, v4")
    e("v_mul_u32_u24 v2, 896, v2\nv_lshl_add_u32 v10, v3, 4, v2\nv_lshlrev_b32 v11, 4, v0")
    e(f"s_mul_i32 s42, s24, {wr*896}\ns_lshl_b32 s30, s26, 7\ns_add_u32 s42, s42, s30")
    e(f"s_mul_i32 s43, s25, {2*ns*1024}\ns_lshl_b32 s30, s24, 11\ns_add_u32 s43, s43, s30\ns_lshl_b32 s44, s24, 14")
    e("s_waitcnt lgkmcnt(0)")
    srd(e, 4, 32, 448*896 if wo else 1792*896)
    srd(e, 8, 34, 64*ns*1024, WS_O if wo else WS_G)
    def issue(i):
        for j in range(4):
            e(f"s_add_u32 m0, s44, {(i%4)*4096 + j*1024}\ns_add_u32 s30, s42, {(8*wr*i + 8*j)*896}")
            e("buffer_load_dwordx4 v10, s[4:7], s30 offen lds")
        for sp in range(2):
            for tb in range(2):
                e(f"s_add_u32 s30, s43, {(tb*ns + 16*i + sp)*1024}")
                e(f"buffer_load_dwordx4 {vr(BR+16*(i%4)+8*sp+4*tb,4)}, v11, s[8:11], s30 offen")
    issued = min(nb, 4)
    for i in range(issued): issue(i)
    e("v_lshrrev_b32 v12, 5, v0\nv_and_b32 v15, 31, v0")
    e("s_lshr_b32 s48, s24, 2\ns_bfe_u32 s50, s24, 0x10001\ns_and_b32 s53, s24, 1")
    e("s_lshl_b32 s29, s25, 1\ns_add_u32 s51, s29, s50\ns_lshl_b32 s29, s26, 1\ns_add_u32 s49, s29, s48")
    e("s_lshl_b32 s29, s51, 5\nv_add_u32 v16, s29, v15\nv_mul_u32_u24 v16, 896, v16\nv_lshl_add_u32 v16, v12, 3, v16")
    e("s_lshl_b32 s52, s49, 6\ns_lshl_b32 s29, s53, 5\ns_add_u32 s52, s52, s29")
    e("s_mul_i32 s29, s51, 28\ns_lshl_b32 s30, s49, 1\ns_add_u32 s29, s29, s30\ns_add_u32 s29, s29, s53\ns_lshl_b32 s55, s29, 10")
    if wo:
        srd(e, 12, 34, 64*28*1024, WS_H); srd(e, 20, 36, 2048*896); srd(e, 16, 34, 7*2048*8, WS_STAT)
        for q in range(2):
            e(f"buffer_load_dwordx2 {vr(AUX+2*q,2)}, v16, s[20:23], s52 offen offset:{16*q}")
        nx = 2
    else:
        srd(e, 12, 40, 2048*896); srd(e, 16, 38, 896); srd(e, 20, 34, 64*28*1024, WS_H)
        e(f"buffer_load_dwordx4 {vr(AUX,4)}, v11, s[20:23], s55 offen\nv_lshlrev_b32 v17, 3, v12")
        for q in range(2):
            e(f"buffer_load_dwordx2 {vr(AUX+4+2*q,2)}, v17, s[16:19], s52 offen offset:{16*q}")
        nx = 3
    e("v_bfe_u32 v13, v0, 2, 2\nv_and_b32 v14, 3, v0\nv_bfe_u32 v18, v0, 4, 1")
    e("v_lshl_add_u32 v19, v12, 2, v13\nv_lshlrev_b32 v19, 7, v19\nv_add_u32 v19, s44, v19")
    e("v_and_b32 v20, 1, v14\nv_lshl_add_u32 v19, v20, 3, v19\nv_lshrrev_b32 v20, 1, v14\nv_lshl_add_u32 v20, v18, 1, v20")
    e("v_lshrrev_b32 v21, 1, v13\nv_lshlrev_b32 v21, 2, v21")
    e("v_xor_b32 v22, v20, v21\nv_lshl_add_u32 v2, v22, 4, v19\nv_add_u32 v20, 4, v20\nv_xor_b32 v22, v20, v21\nv_lshl_add_u32 v4, v22, 4, v19")
    st()
    for i in range(nb):
        later = 8*(issued - i - 1) + (nx if issued <= 4 else 0)
        e(f"s_waitcnt vmcnt({later})")
        if i == 0: st()
        for sp in range(2):
            for fb in range(2):
                o = (i % 4)*4096 + sp*2048
                e(f"ds_read_b64_tr_b16 {vr(AF_+8*sp+4*fb,2)}, v{2+2*fb} offset:{o}")
                e(f"ds_read_b64_tr_b16 {vr(AF_+8*sp+4*fb+2,2)}, v{2+2*fb} offset:{o+1024}")
        for sp in range(2):
            e(f"s_waitcnt lgkmcnt({4 if sp == 0 else 0})")
            for fb in range(2):
                for tb in range(2):
                    d = vr(ACC+16*(2*fb+tb), 16)
                    e(f"v_mfma_f32_32x32x16_bf16 {d}, {vr(AF_+8*sp+4*fb,4)}, {vr(BR+16*(i%4)+8*sp+4*tb,4)}, {'0' if i == 0 and sp == 0 else d}")
        if issued < nb:
            issue(issued); issued += 1
    st()
    e("v_add_u32 v17, s44, v11\ns_nop 7")
    for b in range(4):
        for q in range(4):
            e(f"ds_write_b128 v17, {vr(ACC+16*b+4*q,4)} offset:{b*4096+q*1024}")
    e("s_waitcnt lgkmcnt(0)\ns_barrier")
    e("s_lshl_b32 s29, s24, 11\nv_add_u32 v17, s29, v11\nv_add_u32 v18, 0x10000, v17")
    for w in range(8):
        for q in range(2):
            e(f"ds_read_b128 {vr(ACC+8*w+4*q,4)}, v{17+(w>>2)} offset:{(w&3)*16384+q*1024}")
    e("s_waitcnt vmcnt(0)")
    if wo:
        unpack_bf16(e, T, AUX, 4)
    else:
        unpack_bf16(e, T, AUX, 4); unpack_bf16(e, T+8, AUX+4, 4)
        for r in range(0, 8, 2): e(f"v_pk_add_f32 {vr(T+r,2)}, {vr(T+r,2)}, {vr(T+8+r,2)}")
    e("s_waitcnt lgkmcnt(0)")
    for s_ in (4, 2, 1):
        for w in range(s_):
            for r in range(0, 8, 2):
                e(f"v_pk_add_f32 {vr(ACC+8*w+r,2)}, {vr(ACC+8*w+r,2)}, {vr(ACC+8*(w+s_)+r,2)}")
    for r in range(0, 8, 2): e(f"v_pk_add_f32 {vr(ACC+r,2)}, {vr(ACC+r,2)}, {vr(T+r,2)}")
    for i in range(4): e(f"v_cvt_pk_bf16_f32 v{T+16+i}, v{ACC+2*i}, v{ACC+2*i+1}")
    if wo:
        e(f"buffer_store_dwordx4 {vr(T+16,4)}, v11, s[12:15], s55 offen")
        unpack_bf16(e, ACC, T+16, 4)
        e(f"v_add_f32 v{T}, v{ACC}, v{ACC+1}\nv_mul_f32 v{T+1}, v{ACC}, v{ACC}\nv_fmac_f32 v{T+1}, v{ACC+1}, v{ACC+1}")
        for r in range(2, 8):
            e(f"v_add_f32 v{T}, v{T}, v{ACC+r}\nv_fmac_f32 v{T+1}, v{ACC+r}, v{ACC+r}")
        e(f"s_lshl_b32 s29, s24, 9\ns_add_u32 s29, s29, {LST}\nv_lshlrev_b32 v3, 3, v0\nv_add_u32 v3, s29, v3")
        e(f"ds_write_b64 v3, {vr(T,2)}\ns_waitcnt lgkmcnt(0)\ns_barrier")
        e(f"s_cmp_lg_u32 s24, 0\ns_cbranch_scc1 {name}_done")
        e(f"v_lshlrev_b32 v3, 3, v15\nv_lshl_add_u32 v3, v12, 10, v3\nv_add_u32 v3, {LST}, v3")
        for k, o in enumerate((0, 256, 512, 768, 2048, 2304, 2560, 2816)):
            e(f"ds_read_b64 {vr(ACC+2*k,2)}, v3 offset:{o}")
        e("s_waitcnt lgkmcnt(0)")
        for k in range(1, 8): e(f"v_pk_add_f32 {vr(ACC,2)}, {vr(ACC,2)}, {vr(ACC+2*k,2)}")
        e(f"v_mov_b32 v4, v{ACC}\nv_mov_b32 v5, v{ACC+1}")
        e("s_lshl_b32 s29, s26, 11\ns_lshl_b32 s30, s25, 6\ns_add_u32 s29, s29, s30\ns_lshl_b32 s29, s29, 3\nv_lshlrev_b32 v3, 3, v0")
        e("buffer_store_dwordx2 v[4:5], v3, s[16:19], s29 offen")
        e(f"{name}_done:")
    else:
        for q in range(2):
            e(f"buffer_store_dwordx2 {vr(T+16+2*q,2)}, v16, s[12:15], s52 offen offset:{16*q}")
    st.flush(name, 'c')
    e(f"{name}_end:\ns_endpgm")
    return e.text()
```

```python
import sys
from common import *
from gemm import gen_gemm
from attn import gen_attn
from t2 import gen_t2
from t1b import gen_ffn1
src = open('sequential_preLN__mha_block__dense_activation_gelu__prompt.s.ref').read().split("\n")
hdr = [l for l in src if l.startswith(";") and "offset" in l.split("shape")[0] or l.startswith("; Kernarg")]
K = [(MAIN, 'qkv', 256, 133120), ("attn_kernel", 'attn', 256, 135424), ("wo_kernel", 'wo', 224, 135168),
     ("ffn1_kernel", 'ffn1', 224, 115712), ("ffn2_kernel", 'ffn2', 224, 131072)]
nk = int(sys.argv[2]) if len(sys.argv) > 2 else len(K)
out = "\n".join(hdr) + "\n"
for n, k, g, lds in K[:nk]:
    out += f"; @launch kernel={n} grid=({g},1,1) block=(512,1,1) lds={lds}\n"
out += '.amdgcn_target "amdgcn-amd-amdhsa--gfx950"\n.text\n'
for n, k, g, lds in K[:nk]:
    out += gen_attn(n) if k == 'attn' else gen_t2(n, k) if k in ('wo','ffn2') else gen_ffn1(n) if k == 'ffn1' else gen_gemm(n, k)
out += '.section .rodata,"a"\n'
for n, k, g, lds in K[:nk]:
    out += kernel_desc(n)
open(sys.argv[1], "w").write(out)
print(len(out), "bytes")
```

```python
import sys
from common import *
from gemm import gen_gemm
from attn import gen_attn
from t2 import gen_t2
from t1b import gen_ffn1
src = open('sequential_preLN__mha_block__dense_activation_gelu__prompt.s.ref').read().split("\n")
hdr = [l for l in src if l.startswith(";") and "offset" in l.split("shape")[0] or l.startswith("; Kernarg")]
K = [(MAIN, 'qkv', 220, 163840), ("attn_kernel", 'attn', 256, 143616), ("wo_kernel", 'wo', 224, 135168),
     ("ffn1_kernel", 'ffn1', 224, 115712), ("ffn2_kernel", 'ffn2', 224, 131072)]
nk = int(sys.argv[2]) if len(sys.argv) > 2 else len(K)
out = "\n".join(hdr) + "\n"
for n, k, g, lds in K[:nk]:
    out += f"; @launch kernel={n} grid=({g},1,1) block=(512,1,1) lds={lds}\n"
out += '.amdgcn_target "amdgcn-amd-amdhsa--gfx950"\n.text\n'
for n, k, g, lds in K[:nk]:
    out += gen_attn(n) if k == 'attn' else gen_t2(n, k) if k in ('wo','ffn2') else gen_ffn1(n) if k == 'ffn1' else gen_gemm(n, k)
out += '.section .rodata,"a"\n'
for n, k, g, lds in K[:nk]:
    out += kernel_desc(n)
import os, re
SC = os.environ.get("SC", "")
if SC:
    out = re.sub(r"(buffer_store_dword\w* .* offen[^\n]*)", lambda m: m.group(1) + " " + SC, out)
open(sys.argv[1], "w").write(out)
print(len(out), "bytes")
```

```python
from common import *
import os
PERM = int(os.environ.get('PERM','0'))

Q, O, S, P, KV = 32, 64, 128, 160, 176
MX = 224
RED = 0
XCH = 131072
FLAG = XCH + 4096
QL = XCH + 4096 + 256

def kv(kb): return KV + 16*(kb % 3)

def load_kv(e, kb):
    b = kv(kb)
    e(f"s_add_u32 s30, s42, {kb*2048}")
    e(f"buffer_load_dwordx4 {vr(b,4)}, v1, s[4:7], s30 offen")
    e(f"buffer_load_dwordx4 {vr(b+4,4)}, v1, s[4:7], s30 offen offset:1024")
    e(f"s_add_u32 s30, s30, {2*MB}")
    e(f"buffer_load_dwordx4 {vr(b+8,4)}, v1, s[4:7], s30 offen")
    e(f"buffer_load_dwordx4 {vr(b+12,4)}, v1, s[4:7], s30 offen offset:1024")

def mfma(d, a, b, c):
    return f"v_mfma_f32_32x32x16_bf16 {vr(d,16)}, {vr(a,4)}, {vr(b,4)}, {c}"

def main_pass(e, sub, st=None):
    load_kv(e, 0); load_kv(e, 1)
    for r in range(64): e(f"v_mov_b32 v{O+r}, 0")
    if not sub:
        e(f"s_waitcnt vmcnt(8)\ns_barrier\nv_add_u32 v2, {QL}, v1")
        for k in range(8): e(f"ds_read_b128 {vr(Q+4*k,4)}, v2 offset:{k*1024}")
    def qk(n):
        kb, qb = n >> 2, n & 3; s = S + 16*(n & 1)
        return [mfma(s, kv(kb), Q+8*qb, "0"), mfma(s, kv(kb)+4, Q+8*qb+4, vr(s,16))]
    def pv(n):
        kb, qb = n >> 2, n & 3; p = P + 8*(n & 1); o = O + 16*qb
        return [mfma(o, kv(kb)+8, p, vr(o,16)), mfma(o, kv(kb)+12, p+4, vr(o,16))]
    def valu(n):
        s = S + 16*(n & 1); p = P + 8*(n & 1); qb = n & 3; g = []
        for k in range(4):
            x = []
            if sub: x += [f"v_sub_f32 v{s+4*k+i}, v{s+4*k+i}, v{MX+qb}" for i in range(4)]
            x += [f"v_exp_f32 v{s+4*k+i}, v{s+4*k+i}" for i in range(4)]
            if PERM: x += [f"v_perm_b32 v{p+2*k+i}, v{s+4*k+2*i+1}, v{s+4*k+2*i}, s54" for i in range(2)]
            else: x += [f"v_cvt_pk_bf16_f32 v{p+2*k+i}, v{s+4*k+2*i}, v{s+4*k+2*i+1}" for i in range(2)]
            g.append(x)
        return g
    e("s_waitcnt vmcnt(6) lgkmcnt(0)")
    if st: st()
    for x in qk(0): e(x)
    e("s_nop 7\ns_nop 3")
    for n in range(32):
        if n == 1: e("s_waitcnt vmcnt(4)")
        if (n+1) % 4 == 0 and n+1 < 32:
            e(f"s_waitcnt vmcnt({4 if (n+1)//4 < 7 else 0})")
        m = (qk(n+1) if n+1 < 32 else [None, None]) + (pv(n-1) if n else [None, None])
        g = valu(n)
        for k in range(4):
            if m[k]: e(m[k])
            for x in g[k]: e(x)
        if n % 4 == 1 and n//4 + 2 < 8:
            load_kv(e, n//4 + 2)
        if n == 27 and not sub:
            e("buffer_load_dwordx4 v[228:231], v1, s[12:15], s55 offen")
    e("s_nop 1")
    for x in pv(31): e(x)

def reduce_store(e, name):
    e("s_lshl_b32 s29, s24, 14\nv_add_u32 v2, s29, v1\ns_nop 7")
    for qb in range(4):
        for q in range(4):
            e(f"ds_write_b128 v2, {vr(O+16*qb+4*q,4)} offset:{qb*4096+q*1024}")
    e("s_waitcnt lgkmcnt(0)\ns_barrier")
    e("s_lshr_b32 s48, s24, 1\ns_and_b32 s49, s24, 1")
    e("s_lshl_b32 s29, s48, 12\ns_lshl_b32 s30, s49, 11\ns_add_u32 s30, s30, s29\nv_add_u32 v2, s30, v1")
    e("v_add_u32 v3, 0x10000, v2")
    e("v_and_b32 v4, 31, v0\nv_lshlrev_b32 v4, 4, v4\ns_add_u32 s29, s29, 3584\nv_add_u32 v4, s29, v4\nv_add_u32 v5, 0x10000, v4")
    for w in range(8):
        for q in range(2):
            e(f"ds_read_b128 {vr(O+8*w+4*q,4)}, v{2+(w>>2)} offset:{(w&3)*16384+q*1024}")
        e(f"ds_read_b32 v{S+w}, v{4+(w>>2)} offset:{(w&3)*16384}")
        if w == 3: e("s_waitcnt lgkmcnt(6)")
    e("s_waitcnt lgkmcnt(0)")
    for st in (4, 2, 1):
        for w in range(st):
            for r in range(0, 8, 2):
                e(f"v_pk_add_f32 {vr(O+8*w+r,2)}, {vr(O+8*w+r,2)}, {vr(O+8*(w+st)+r,2)}")
            e(f"v_add_f32 v{S+w}, v{S+w}, v{S+w+st}")
    e(f"v_rcp_f32 v{S+1}, v{S}")
    e(f"v_cmp_le_f32 vcc, 0x21800000, v{S}\nv_cmp_ge_f32 s[50:51], s44, v{S}")
    for r in range(8):
        e(f"v_mul_f32 v{O+r}, v{O+r}, v{S+1}")
    e("s_and_b64 s[50:51], s[50:51], vcc")
    e("s_cmp_eq_u32 s49, 1\ns_cselect_b64 s[52:53], s[46:47], 0")
    for r in range(4, 8):
        e(f"v_cndmask_b32 v{O+r}, v{O+r}, 0, s[52:53]")
    for i in range(4):
        e(f"v_cvt_pk_bf16_f32 v{P+i}, v{O+2*i}, v{O+2*i+1}")
    e("s_lshl_b32 s29, s26, 2\ns_add_u32 s29, s29, s48\ns_lshl_b32 s29, s29, 5")
    e("s_lshl_b32 s30, s25, 1\ns_add_u32 s29, s29, s30\ns_add_u32 s29, s29, s49\ns_lshl_b32 s29, s29, 10")
    e(f"buffer_store_dwordx4 {vr(P,4)}, v1, s[8:11], s29 offen")

def gen_attn(name):
    e = Em()
    kernel_head(e, name)
    st = Stamp(e, 12); st()
    e(f"s_cmp_ge_u32 s2, 256\ns_cbranch_scc1 {name}_end")
    load_ptr(e, 34, 'ws'); load_ptr(e, 36, 'w2'); load_ptr(e, 38, 'wo')
    e("v_lshrrev_b32 v1, 6, v0\nv_and_b32 v0, 63, v0\ns_nop 0\nv_readfirstlane_b32 s24, v1")
    e("s_and_b32 s27, s2, 7\ns_lshr_b32 s28, s2, 3\ns_and_b32 s25, s28, 1\ns_lshl_b32 s27, s27, 1")
    e("s_add_u32 s25, s25, s27\ns_lshr_b32 s26, s28, 1")
    e("s_mov_b32 s46, 0\ns_mov_b32 s47, -1\ns_mov_b32 s44, 0x5d800000\ns_mov_b32 s45, 0\ns_mov_b32 s54, 0x07060302")
    e("v_lshlrev_b32 v1, 4, v0")
    e("s_waitcnt lgkmcnt(0)")
    srd(e, 4, 34, 6*MB, WS_Q); srd(e, 8, 34, 2*MB, WS_O)
    e("s_lshl_b32 s55, s2, 3\ns_add_u32 s55, s55, s24\ns_cmp_lt_u32 s55, 1568")
    e("s_cselect_b32 s12, s36, s38\ns_cselect_b32 s13, s37, s39\ns_mov_b32 s29, 401408\ns_cselect_b32 s14, 1605632, s29\ns_mov_b32 s15, 0x00020000")
    e("s_cselect_b32 s29, 0, 1568\ns_sub_u32 s55, s55, s29\ns_lshl_b32 s55, s55, 10")
    e("s_lshl_b32 s29, s25, 6\ns_lshl_b32 s30, s26, 2\ns_add_u32 s30, s30, s29\ns_lshl_b32 s43, s30, 11")
    e(f"s_lshl_b32 s30, s24, 3\ns_add_u32 s30, s30, s29\ns_lshl_b32 s42, s30, 11\ns_add_u32 s42, s42, {WS_K}")
    e(f"s_lshl_b32 s29, s24, 10\ns_add_u32 m0, s29, {QL}\ns_add_u32 s30, s43, s29")
    e("buffer_load_dwordx4 v1, s[4:7], s30 offen lds")
    e(f"v_mov_b32 v2, {FLAG}\nv_mov_b32 v3, 0\nds_write_b32 v2, v3")
    main_pass(e, False, st)
    st()
    e(f"{name}_reduce:")
    reduce_store(e, name)
    st.flush(name, 'a')
    e(f"s_cmp_eq_u32 s45, 1\ns_cbranch_scc1 {name}_end")
    e(f"v_mov_b32 v2, {FLAG}\nv_mov_b32 v3, 1")
    e(f"s_cmp_eq_u64 s[50:51], -1\ns_cbranch_scc1 {name}_ok\nds_write_b32 v2, v3\n{name}_ok:")
    e("s_waitcnt lgkmcnt(0)\ns_barrier\nds_read_b32 v3, v2\ns_waitcnt lgkmcnt(0)\ns_nop 0")
    e(f"v_readfirstlane_b32 s29, v3\ns_nop 3\ns_cmp_eq_u32 s29, 0\ns_cbranch_scc1 {name}_end")
    e("s_mov_b32 s45, 1\ns_waitcnt vmcnt(0)")
    for qb in range(4): e(f"v_mov_b32 v{MX+qb}, 0xff800000")
    e("s_mov_b32 s48, 0")
    e(f"{name}_mx:")
    e("s_lshl_b32 s30, s48, 11\ns_add_u32 s30, s30, s42")
    e(f"buffer_load_dwordx4 {vr(KV,4)}, v1, s[4:7], s30 offen")
    e(f"buffer_load_dwordx4 {vr(KV+4,4)}, v1, s[4:7], s30 offen offset:1024")
    e("s_waitcnt vmcnt(0)")
    for qb in range(4):
        e(mfma(S, KV, Q+8*qb, "0")); e(mfma(S, KV+4, Q+8*qb+4, vr(S,16)))
        e("s_nop 7\ns_nop 7")
        for r in range(0, 16, 2):
            e(f"v_max3_f32 v{MX+qb}, v{MX+qb}, v{S+r}, v{S+r+1}")
        e("s_nop 7")
    e(f"s_add_u32 s48, s48, 1\ns_cmp_lt_u32 s48, 8\ns_cbranch_scc1 {name}_mx")
    e(f"s_lshl_b32 s29, s24, 9\ns_add_u32 s29, s29, {XCH}\nv_and_b32 v4, 31, v0\nv_lshlrev_b32 v4, 2, v4\nv_add_u32 v2, s29, v4")
    for qb in range(4):
        swap_add(e, MX+qb, 3, "v_max_f32")
        e(f"ds_write_b32 v2, v{MX+qb} offset:{qb*128}")
    e(f"s_waitcnt lgkmcnt(0)\ns_barrier\nv_add_u32 v2, {XCH}, v4")
    for qb in range(4):
        for w in range(8):
            e(f"ds_read_b32 v{S+w}, v2 offset:{w*512+qb*128}")
        e("s_waitcnt lgkmcnt(0)")
        e(f"v_max3_f32 v{MX+qb}, v{S}, v{S+1}, v{S+2}\nv_max3_f32 v{MX+qb}, v{MX+qb}, v{S+3}, v{S+4}")
        e(f"v_max3_f32 v{MX+qb}, v{MX+qb}, v{S+5}, v{S+6}\nv_max_f32 v{MX+qb}, v{MX+qb}, v{S+7}")
    main_pass(e, True)
    e(f"s_branch {name}_reduce")
    e(f"{name}_end:")
    e("s_endpgm")
    return e.text()
```

```python
from common import *
import os
from t1b import gen_side

SLOT = 32768
STAT = 0
ONES = 45
FR, ACC = 32, 64
V_SUM, V_SQ, V_CS = 128, 129, 130
AUX = 132
T = 148

CFG = {
 'qkv':  dict(t=1, nwg=192, nc=7,  wbytes=448*1344*2, wstride=2688, wcol=224, wrows=64),
 'ffn1': dict(t=1, nwg=224, nc=7,  wbytes=448*1792*2, wstride=3584, wcol=256, wrows=64),
 'wo':   dict(t=2, nwg=224, nc=4,  wbytes=448*448*2,  wstride=896,  wcol=128, wrows=112, ns=32),
 'ffn2': dict(t=2, nwg=224, nc=14, wbytes=1792*448*2, wstride=896,  wcol=128, wrows=128, ns=112),
}

def acc(fb, tb): return ACC + 16*(2*fb+tb)

def prologue(e, name, kind, c):
    e(f"s_cmp_ge_u32 s2, {c['nwg']}")
    e(f"s_cbranch_scc1 {name}_side" if kind == 'qkv' else f"s_cbranch_scc1 {name}_end")
    warg = dict(qkv='wqkv', ffn1='w1', wo='wo', ffn2='w2')[kind]
    load_ptr(e, 32, warg); load_ptr(e, 34, 'ws'); load_ptr(e, 36, 'x'); load_ptr(e, 40, 'out')
    load_ptr(e, 38, 'b1' if kind == 'ffn1' else 'b2')
    e("v_lshrrev_b32 v1, 6, v0")
    e("v_and_b32 v0, 63, v0")
    e("s_and_b32 s27, s2, 7")
    e("v_readfirstlane_b32 s24, v1")
    e("s_lshr_b32 s28, s2, 3")
    if c['t'] == 1:
        e("s_and_b32 s25, s27, 3\ns_lshl_b32 s25, s25, 2\ns_and_b32 s29, s28, 3\ns_add_u32 s25, s25, s29")
        e("s_lshr_b32 s26, s27, 2")
        e(f"s_mul_i32 s26, s26, {6 if kind == 'qkv' else 7}")
        e("s_lshr_b32 s29, s28, 2\ns_add_u32 s26, s26, s29")
    else:
        e("s_lshl_b32 s25, s27, 2\ns_and_b32 s29, s28, 3\ns_add_u32 s25, s25, s29\ns_lshr_b32 s26, s28, 2")
    e(f"s_mov_b32 s{ONES}, 0x3f803f80")
    e("s_mov_b32 s46, 0\ns_mov_b32 s47, -1")
    e("s_waitcnt lgkmcnt(0)")
    srd(e, 4, 32, c['wbytes'])
    if kind == 'qkv':
        srd(e, 8, 36, 2048*896); srd(e, 12, 34, 6*MB, WS_Q)
    elif kind == 'ffn1':
        srd(e, 8, 34, 64*28*1024, WS_H); srd(e, 12, 34, 64*112*1024, WS_G); srd(e, 16, 38, 1792*2)
    elif kind == 'wo':
        srd(e, 8, 34, 64*32*1024, WS_O); srd(e, 12, 34, 64*28*1024, WS_H); srd(e, 20, 36, 2048*896)
    else:
        srd(e, 8, 34, 64*112*1024, WS_G); srd(e, 12, 40, 2048*896); srd(e, 16, 38, 896)
        srd(e, 20, 34, 64*28*1024, WS_H)
    e("s_cmp_lt_u32 s24, 4")
    e(f"s_cbranch_scc1 {name}_compute")

def loader(e, name, kind, c, st):
    ws, nc = c['wstride'], c['nc']
    e("s_sub_u32 s24, s24, 4")
    e("s_lshl_b32 s44, s24, 12")
    if c['t'] == 1:
        e("v_lshrrev_b32 v2, 4, v0\nv_and_b32 v3, 15, v0\nv_lshlrev_b32 v4, 2, v2\nv_xor_b32 v3, v3, v4")
        wrpi = 4
    else:
        e("v_lshrrev_b32 v2, 3, v0\nv_and_b32 v3, 7, v0\nv_lshrrev_b32 v4, 4, v0\nv_and_b32 v4, 1, v4")
        e("v_lshlrev_b32 v4, 2, v4\nv_xor_b32 v3, v3, v4")
        wrpi = 8
    e(f"s_mov_b32 s30, {ws}\nv_mul_lo_u32 v2, v2, s30\nv_lshl_add_u32 v10, v3, 4, v2")
    e(f"s_mul_i32 s42, s24, {4*wrpi*ws}\ns_mul_i32 s30, s26, {c['wcol']}\ns_add_u32 s42, s42, s30")
    if kind == 'qkv':
        e("v_lshrrev_b32 v2, 3, v0\nv_and_b32 v3, 7, v0\nv_lshrrev_b32 v4, 4, v0\nv_xor_b32 v3, v3, v4")
        e("s_mov_b32 s30, 896\nv_mul_lo_u32 v2, v2, s30\nv_lshl_add_u32 v11, v3, 4, v2")
        e("v_xor_b32 v3, 4, v3\nv_lshl_add_u32 v12, v3, 4, v2")
        e("s_lshl_b32 s43, s25, 7\ns_lshl_b32 s30, s24, 5\ns_add_u32 s43, s43, s30\ns_mul_i32 s43, s43, 896")
        aoff = lambda ch, i: ch*128 + i*8*896
        areg = lambda i: 11 + (i & 1)
    else:
        e("v_lshlrev_b32 v11, 4, v0")
        areg = lambda i: 11
        if kind == 'ffn1':
            e("s_lshl_b32 s43, s25, 2\ns_add_u32 s43, s43, s24\ns_mul_i32 s43, s43, 28672")
            aoff = lambda ch, i: (4*ch + i)*1024
        else:
            ns = c['ns']
            e(f"s_lshl_b32 s43, s25, 1\ns_lshr_b32 s30, s24, 1\ns_add_u32 s43, s43, s30\ns_mul_i32 s43, s43, {ns*1024}")
            e("s_and_b32 s30, s24, 1\ns_lshl_b32 s30, s30, 12\ns_add_u32 s43, s43, s30")
            aoff = lambda ch, i: (8*ch + i)*1024
    def issue(ch):
        so = (ch % 5)*SLOT
        for i in range(4):
            e(f"s_add_u32 m0, s44, {so + i*1024}")
            e(f"s_add_u32 s30, s42, {(c['wrows']*ch + wrpi*i)*ws}")
            e("buffer_load_dwordx4 v10, s[4:7], s30 offen lds")
            e(f"s_add_u32 m0, s44, {so + 16384 + i*1024}")
            e(f"s_add_u32 s30, s43, {aoff(ch, i)}")
            e(f"buffer_load_dwordx4 v{areg(i)}, s[8:11], s30 offen lds")
    issued = 2
    for ch in range(issued): issue(ch)
    st()
    for ch in range(nc):
        e(f"s_waitcnt vmcnt({8*(issued-ch-1)})")
        if ch in (0, 1, nc-1): st()
        e("s_barrier")
        while issued < min(nc, 2*ch+4):
            issue(issued); issued += 1
    e("s_sub_u32 s24, s24, 4") if False else None
    st.flush(name, 'l')
    e("s_endpgm")

def compute_addr(e, kind, c):
    e("v_lshrrev_b32 v10, 4, v0\nv_and_b32 v11, 1, v10\nv_lshrrev_b32 v12, 5, v0")
    e("v_bfe_u32 v13, v0, 2, 2\nv_and_b32 v14, 3, v0")
    e("v_and_b32 v15, 31, v0")
    if c['t'] == 1:
        e("s_and_b32 s30, s24, 1\ns_lshr_b32 s31, s24, 1")
        e("s_lshl_b32 s29, s31, 1\ns_add_u32 s48, s29, s30\ns_add_u32 s49, s29, 1\ns_sub_u32 s49, s49, s30")
        e("s_lshl_b32 s29, s30, 1\ns_add_u32 s50, s29, s31\ns_add_u32 s51, s29, 1\ns_sub_u32 s51, s51, s31")
        hrows = 8 if kind == 'qkv' else 4
        cb = 56 if kind == 'qkv' else 64
        e(f"v_mul_u32_u24 v16, {hrows}, v12\nv_add_u32 v16, v16, v13\nv_lshlrev_b32 v16, 8, v16")
        e("v_lshlrev_b32 v17, 5, v11\nv_lshl_add_u32 v17, v14, 3, v17\nv_lshlrev_b32 v18, 2, v13")
        for k, sfb in ((2, 48), (4, 49)):
            e(f"s_mul_i32 s29, s{sfb}, {cb}\nv_add_u32 v19, s29, v17")
            e("v_lshrrev_b32 v20, 4, v19\nv_xor_b32 v20, v20, v18\nv_and_b32 v19, 8, v19")
            e(f"v_lshl_add_u32 v19, v20, 4, v19\nv_add_u32 v{k}, v19, v16\nv_add_u32 v{k+1}, 0x10000, v{k}")
        if kind == 'qkv':
            e("v_bfe_u32 v19, v15, 1, 3\nv_xor_b32 v19, v19, v12\nv_lshlrev_b32 v19, 4, v19\nv_lshl_add_u32 v19, v15, 7, v19")
        else:
            e("v_lshlrev_b32 v19, 4, v0")
        for k, stb in ((6, 50), (8, 51)):
            e(f"s_lshl_b32 s29, s{stb}, 12\nv_add_u32 v{k}, s29, v19\nv_add_u32 v{k+1}, 0x10000, v{k}")
    else:
        wr = 28 if kind == 'wo' else 32
        e(f"s_mul_i32 s29, s24, {wr}\nv_lshl_add_u32 v16, v12, 2, v13\nv_add_u32 v16, s29, v16\nv_lshlrev_b32 v16, 7, v16")
        e("v_lshrrev_b32 v17, 1, v14\nv_lshl_add_u32 v17, v11, 1, v17")
        e("v_lshrrev_b32 v18, 1, v13\nv_lshlrev_b32 v18, 2, v18")
        e("v_and_b32 v19, 1, v14\nv_lshlrev_b32 v19, 3, v19\nv_add_u32 v16, v16, v19")
        for k, fb in ((2, 0), (4, 1)):
            e(f"v_add_u32 v20, {4*fb}, v17\nv_xor_b32 v20, v20, v18\nv_lshl_add_u32 v{k}, v20, 4, v16\nv_add_u32 v{k+1}, 0x10000, v{k}")
        e("s_lshl_b32 s29, s24, 11\nv_lshlrev_b32 v19, 4, v0\nv_add_u32 v6, s29, v19\nv_add_u32 v7, 0x10000, v6")
        e("v_add_u32 v8, 0x2000, v6\nv_add_u32 v9, 0x10000, v8")

def main_loop(e, kind, c, vform, st):
    for k in range(4): e(f"v_add_u32 v{26+k}, 0x20000, v{2+2*k}")
    t1 = c['t'] == 1
    spc = 4 if t1 else 2
    steps = [(ch, s) for ch in range(c['nc']) for s in range(spc)]
    def reads(n):
        ch, s = steps[n]; slot = ch % 5; hi = slot >> 1; so = (slot & 1)*SLOT; p = FR + 16*(n & 1)
        ad = lambda reg: (reg + hi) if hi < 2 else 26 + (reg - 2)//2
        r = []
        astep = 4096 if t1 else 2048
        a2 = (1024 if kind == 'qkv' else 2048) if t1 else 1024
        for k, reg in ((0, 2), (1, 4)):
            o = so + s*astep
            r.append(f"ds_read_b64_tr_b16 {vr(p+4*k,2)}, v{ad(reg)} offset:{o}")
            r.append(f"ds_read_b64_tr_b16 {vr(p+4*k+2,2)}, v{ad(reg)} offset:{o+a2}")
        for k, reg in ((0, 6), (1, 8)):
            if kind == 'qkv':
                r.append(f"v_xor_b32 v{22+k}, {s << 5}, v{ad(reg)}\nds_read_b128 {vr(p+8+4*k,4)}, v{22+k} offset:{so+16384}")
            else:
                r.append(f"ds_read_b128 {vr(p+8+4*k,4)}, v{reg+hi} offset:{so+16384+s*1024}")
        return r
    def mf(n, fb, tb):
        p = FR + 16*(n & 1); a, b = vr(p+4*fb, 4), vr(p+8+4*tb, 4)
        if vform: a, b = b, a
        d = vr(acc(fb, tb), 16)
        return f"v_mfma_f32_32x32x16_bf16 {d}, {a}, {b}, {'0' if n == 0 else d}"
    st()
    e("s_barrier")
    st()
    for x in reads(0): e(x)
    for n in range(len(steps)):
        p = FR + 16*(n & 1)
        e("s_waitcnt lgkmcnt(0)")
        nxt = reads(n+1) if n+1 < len(steps) else []
        if nxt and steps[n+1][0] != steps[n][0]:
            e("s_barrier")
        fill = []
        if t1 and not int(os.environ.get('NOFILL','0')):
            fill = [f"v_dot2c_f32_bf16 v{V_SUM}, s{ONES}, v{p+8+i}" for i in range(4)]
            fill += [f"v_dot2c_f32_bf16 v{V_SQ}, v{p+8+i}, v{p+8+i}" for i in range(4)]
            fill += [f"v_dot2c_f32_bf16 v{V_CS}, s{ONES}, v{p+i}" for i in range(4)]
        e(mf(n, 0, 0))
        for x in nxt[:3]: e(x)
        e(mf(n, 0, 1))
        for x in nxt[3:]: e(x)
        for x in fill[:4]: e(x)
        e(mf(n, 1, 0))
        for x in fill[4:8]: e(x)
        e(mf(n, 1, 1))
        for x in fill[8:]: e(x)
    st()

def store_fa(e, src, voff, soff, srdn=12):
    for i in range(8):
        e(f"v_cvt_pk_bf16_f32 v{T+40+i}, v{src+2*i}, v{src+2*i+1}")
    e(f"buffer_store_dwordx4 {vr(T+40,4)}, v{voff}, s[{srdn}:{srdn+3}], s{soff} offen")
    e(f"buffer_store_dwordx4 {vr(T+44,4)}, v{voff}, s[{srdn}:{srdn+3}], s{soff} offen offset:1024")

def stats_to_lds(e):
    e("s_nop 3")
    for v in (V_SUM, V_SQ, V_CS): swap_add(e, v, T)
    e(f"s_mov_b32 s29, {1.0/448!r}") if False else None
    e("s_mov_b32 s29, 0x3b124925")
    e(f"v_mul_f32 v{V_SUM}, s29, v{V_SUM}\nv_mul_f32 v{V_SQ}, s29, v{V_SQ}")
    e(f"v_fma_f32 v{V_SQ}, -v{V_SUM}, v{V_SUM}, v{V_SQ}\nv_max_f32 v{V_SQ}, 0, v{V_SQ}")
    e(f"v_add_f32 v{V_SQ}, 0x3727c5ac, v{V_SQ}\nv_rsq_f32 v{V_SQ}, v{V_SQ}\ns_nop 0")
    e(f"v_mul_f32 v{V_SUM}, v{V_SUM}, v{V_SQ}")
    e(f"s_lshl_b32 s29, s50, 7\ns_add_u32 s29, s29, {STAT}\nv_lshlrev_b32 v16, 2, v15\nv_add_u32 v17, s29, v16")
    e(f"ds_write_b32 v17, v{V_SQ}\nds_write_b32 v17, v{V_SUM} offset:512")
    e(f"s_lshl_b32 s29, s48, 7\ns_add_u32 s29, s29, {STAT}\nv_add_u32 v17, s29, v16")
    e(f"ds_write_b32 v17, v{V_CS} offset:1024")
    e("s_waitcnt lgkmcnt(0)\ns_barrier")

def epi_t1(e, kind, vform):
    stats_to_lds(e)
    e("v_lshlrev_b32 v18, 4, v12\nv_lshlrev_b32 v24, 4, v0")
    for fb in range(2):
        for tb in range(2):
            a = acc(fb, tb); sfb, stb = 48+fb, 50+tb
            lane_s, reg_s = (sfb, stb) if vform else (stb, sfb)
            e(f"s_lshl_b32 s29, s{lane_s}, 7\ns_add_u32 s29, s29, {STAT}\nv_add_u32 v17, s29, v16")
            e(f"s_lshl_b32 s29, s{reg_s}, 7\ns_add_u32 s29, s29, {STAT}\nv_add_u32 v19, s29, v18")
            if vform:
                e(f"ds_read_b32 v{T}, v17 offset:1024")
                for q in range(4):
                    e(f"ds_read_b128 {vr(T+4+4*q,4)}, v19 offset:{32*q}")
                    e(f"ds_read_b128 {vr(T+20+4*q,4)}, v19 offset:{512+32*q}")
                e("s_waitcnt lgkmcnt(0)")
                for r in range(16):
                    e(f"v_mul_f32 v{T+20+r}, v{T}, v{T+20+r}")
                    e(f"v_fma_f32 v{a+r}, v{a+r}, v{T+4+r}, -v{T+20+r}")
                e("v_cmp_gt_u32 vcc, 28, v15\nv_cmp_eq_u32 s[52:53], 28, v15\ns_nop 1")
                e(f"v_cndmask_b32 v{T+1}, 0, 1.0, s[52:53]")
                for r in range(16):
                    e(f"v_cndmask_b32 v{a+r}, v{T+1}, v{a+r}, vcc")
            else:
                e(f"ds_read_b32 v{T}, v17\nds_read_b32 v{T+1}, v17 offset:512")
                for q in range(4):
                    e(f"ds_read_b128 {vr(T+4+4*q,4)}, v19 offset:{1024+32*q}")
                e("s_waitcnt lgkmcnt(0)")
                if kind == 'qkv':
                    e(f"v_mul_f32 v{T}, s54, v{T}\nv_mul_f32 v{T+1}, s54, v{T+1}")
                    for r in range(16):
                        e(f"v_mul_f32 v{T+4+r}, v{T+1}, v{T+4+r}")
                        e(f"v_fma_f32 v{a+r}, v{a+r}, v{T}, -v{T+4+r}")
                    for r in range(12, 16):
                        e(f"v_cndmask_b32 v{a+r}, v{a+r}, 0, s[46:47]")
                else:
                    bb = AUX + 8*fb
                    unpack_bf16(e, T+20, bb, 8)
                    for r in range(0, 16, 2):
                        x = vr(a+r, 2); cs = vr(T+4+r, 2); b = vr(T+20+r, 2); u = vr(T+36, 2); w = vr(T+38, 2)
                        e(f"v_pk_fma_f32 {b}, {cs}, {vr(T,2)}, {b} op_sel:[0,1,0] op_sel_hi:[1,1,1] neg_lo:[1,0,0] neg_hi:[1,0,0]")
                        e(f"v_pk_fma_f32 {x}, {x}, {vr(T,2)}, {b} op_sel_hi:[1,0,1]")
                        e(f"v_pk_mul_f32 {u}, {x}, {x}")
                        e(f"v_pk_fma_f32 {u}, {u}, s[56:57], s[56:57] op_sel:[0,1,0] op_sel_hi:[1,1,0]")
                        e(f"v_pk_mul_f32 {u}, {u}, {x}")
                        e(f"v_exp_f32 v{T+38}, v{T+36}\nv_exp_f32 v{T+39}, v{T+37}\ns_nop 0")
                        e(f"v_pk_add_f32 {w}, {w}, 1.0 op_sel_hi:[1,0]")
                        e(f"v_rcp_f32 v{T+38}, v{T+38}\nv_rcp_f32 v{T+39}, v{T+39}\ns_nop 0")
                        e(f"v_pk_mul_f32 {x}, {x}, {w}")
            if kind == 'qkv':
                e(f"s_lshl_b32 s29, s26, 2\ns_add_u32 s29, s29, s{sfb}\ns_lshl_b32 s29, s29, 6")
                e(f"s_lshl_b32 s30, s25, 2\ns_add_u32 s29, s29, s30\ns_add_u32 s29, s29, s{stb}\ns_lshl_b32 s55, s29, 11")
            else:
                e(f"s_lshl_b32 s29, s25, 2\ns_add_u32 s29, s29, s{stb}\ns_mul_i32 s29, s29, 112")
                e(f"s_lshl_b32 s30, s26, 2\ns_add_u32 s30, s30, s{sfb}\ns_lshl_b32 s30, s30, 1\ns_add_u32 s29, s29, s30\ns_lshl_b32 s55, s29, 10")
            store_fa(e, a, 24, 55)

def pre_t2(e, kind):
    e("s_lshr_b32 s48, s24, 1\ns_and_b32 s50, s24, 1")
    e("s_lshl_b32 s29, s25, 1\ns_add_u32 s51, s29, s50")
    e("s_lshl_b32 s29, s26, 1\ns_add_u32 s49, s29, s48")
    e("s_lshl_b32 s29, s51, 5\nv_add_u32 v16, s29, v15\ns_mov_b32 s29, 896\nv_mul_lo_u32 v16, v16, s29")
    e("v_lshl_add_u32 v16, v12, 3, v16\ns_lshl_b32 s52, s49, 6")
    e("v_lshlrev_b32 v24, 4, v0")
    e("s_mul_i32 s29, s51, 28\ns_lshl_b32 s30, s49, 1\ns_add_u32 s29, s29, s30\ns_lshl_b32 s55, s29, 10")
    if kind == 'wo':
        for q in range(4):
            e(f"buffer_load_dwordx2 {vr(AUX+2*q,2)}, v16, s[20:23], s52 offen offset:{16*q}")
    else:
        e(f"buffer_load_dwordx4 {vr(AUX,4)}, v24, s[20:23], s55 offen")
        e(f"buffer_load_dwordx4 {vr(AUX+4,4)}, v24, s[20:23], s55 offen offset:1024")
        e("v_lshlrev_b32 v17, 3, v12")
        for q in range(4):
            e(f"buffer_load_dwordx2 {vr(AUX+8+2*q,2)}, v17, s[16:19], s52 offen offset:{16*q}")

def epi_t2(e, kind):
    e("s_barrier")
    e("s_lshl_b32 s29, s24, 14\nv_add_u32 v17, s29, v24\ns_nop 7")
    for b in range(4):
        for q in range(4):
            e(f"ds_write_b128 v17, {vr(ACC+16*b+4*q,4)} offset:{b*4096+q*1024}")
    e("s_waitcnt lgkmcnt(0)\ns_barrier")
    e("s_lshl_b32 s29, s48, 1\ns_add_u32 s29, s29, s50\ns_lshl_b32 s29, s29, 12\nv_add_u32 v17, s29, v24")
    for w in range(4):
        for q in range(4):
            e(f"ds_read_b128 {vr(ACC+16*w+4*q,4)}, v17 offset:{w*16384+q*1024}")
    e("s_waitcnt vmcnt(0)")
    unpack_bf16(e, T, AUX, 8)
    if kind == 'ffn2':
        unpack_bf16(e, T+16, AUX+8, 8)
        for r in range(0, 16, 2):
            e(f"v_pk_add_f32 {vr(T+r,2)}, {vr(T+r,2)}, {vr(T+16+r,2)}")
    e("s_waitcnt lgkmcnt(0)")
    for r in range(0, 16, 2):
        e(f"v_pk_add_f32 {vr(ACC+r,2)}, {vr(ACC+r,2)}, {vr(ACC+16+r,2)}")
        e(f"v_pk_add_f32 {vr(ACC+32+r,2)}, {vr(ACC+32+r,2)}, {vr(ACC+48+r,2)}")
        e(f"v_pk_add_f32 {vr(ACC+r,2)}, {vr(ACC+r,2)}, {vr(T+r,2)}")
        e(f"v_pk_add_f32 {vr(ACC+r,2)}, {vr(ACC+r,2)}, {vr(ACC+32+r,2)}")
    if kind == 'wo':
        store_fa(e, ACC, 24, 55)
    else:
        for i in range(8):
            e(f"v_cvt_pk_bf16_f32 v{T+40+i}, v{ACC+2*i}, v{ACC+2*i+1}")
        for q in range(4):
            e(f"buffer_store_dwordx2 {vr(T+40+2*q,2)}, v16, s[12:15], s52 offen offset:{16*q}")

def gen_gemm(name, kind):
    c = CFG[kind]; e = Em()
    kernel_head(e, name)
    base = dict(qkv=0, wo=24, ffn1=36, ffn2=48)[kind]
    s0 = Stamp(e, base); s0()
    prologue(e, name, kind, c)
    sl = Stamp(e, base+6); sl.n = 1
    loader(e, name, kind, c, sl)
    st = Stamp(e, base); st.n = 1
    e(f"{name}_compute:")
    compute_addr(e, kind, c)
    if c['t'] == 1:
        e(f"v_mov_b32 v{V_SUM}, 0\nv_mov_b32 v{V_SQ}, 0\nv_mov_b32 v{V_CS}, 0")
        if kind == 'ffn1':
            e("s_mov_b32 s56, 0xc0135761\ns_mov_b32 s57, 0xbdd2d3e8")
            e("v_lshlrev_b32 v17, 3, v12")
            for fb in range(2):
                e(f"s_lshl_b32 s29, s26, 2\ns_add_u32 s29, s29, s{48+fb}\ns_lshl_b32 s29, s29, 6")
                for q in range(4):
                    e(f"buffer_load_dwordx2 {vr(AUX+8*fb+2*q,2)}, v17, s[16:19], s29 offen offset:{16*q}")
            main_loop(e, kind, c, False, st)
            e("s_waitcnt vmcnt(0)")
            epi_t1(e, kind, False)
            st.flush(name, 'c')
        else:
            e("s_cmp_ge_u32 s26, 8")
            e(f"s_cbranch_scc1 {name}_v")
            e("s_cmp_lt_u32 s26, 4\ns_cselect_b32 s54, 0x3e8b97f6, 1.0")
            main_loop(e, kind, c, False, st)
            epi_t1(e, kind, False)
            st.flush(name, 'c')
            e("s_endpgm")
            e(f"{name}_v:")
            sv = Stamp(e, base); sv.n = 1
            main_loop(e, kind, c, True, sv)
            epi_t1(e, kind, True)
            e("s_endpgm")
            gen_side(e, name)
    else:
        pre_t2(e, kind)
        main_loop(e, kind, c, False, st)
        epi_t2(e, kind)
        st.flush(name, 'c')
    e(f"{name}_end:")
    e("s_endpgm")
    return e.text()
```

```python
from common import *

A_, ACC, B_, ST_ = 32, 64, 128, 240
WS_STAT = 17*MB
WS_CS = 18*MB
CSL = 114688

def gen_ffn1(name):
    e = Em(); kernel_head(e, name)
    s0 = Stamp(e, 36); s0()
    e(f"s_cmp_ge_u32 s2, 224\ns_cbranch_scc1 {name}_end")
    load_ptr(e, 32, 'w1'); load_ptr(e, 34, 'ws')
    e("v_lshrrev_b32 v1, 6, v0\nv_and_b32 v0, 63, v0\ns_and_b32 s27, s2, 7\nv_readfirstlane_b32 s24, v1\ns_lshr_b32 s28, s2, 3")
    e("s_and_b32 s25, s27, 3\ns_lshl_b32 s25, s25, 2\ns_and_b32 s29, s28, 3\ns_add_u32 s25, s25, s29")
    e("s_lshr_b32 s26, s27, 2\ns_mul_i32 s26, s26, 7\ns_lshr_b32 s29, s28, 2\ns_add_u32 s26, s26, s29")
    e(f"s_cmp_lt_u32 s24, 4\ns_cbranch_scc1 {name}_compute")
    sl = Stamp(e, 42); sl.n = 1
    e("s_sub_u32 s24, s24, 4\ns_lshl_b32 s44, s24, 12")
    e("v_lshrrev_b32 v2, 4, v0\nv_and_b32 v3, 15, v0\nv_lshlrev_b32 v4, 2, v2\nv_xor_b32 v3, v3, v4")
    e("v_mul_u32_u24 v2, 3584, v2\nv_lshl_add_u32 v10, v3, 4, v2\nv_lshlrev_b32 v11, 2, v0")
    e(f"s_mul_i32 s42, s24, {16*3584}\ns_lshl_b32 s30, s26, 8\ns_add_u32 s42, s42, s30")
    e("s_and_b32 s30, s24, 1\ns_lshl_b32 s30, s30, 8\ns_lshr_b32 s31, s24, 1\ns_mul_i32 s43, s31, 7168\ns_add_u32 s43, s43, s30")
    e(f"s_lshl_b32 s30, s26, 9\ns_add_u32 s43, s43, s30\ns_lshl_b32 s45, s24, 8\ns_add_u32 s45, s45, {CSL}")
    e("s_waitcnt lgkmcnt(0)")
    srd(e, 4, 32, 448*3584); srd(e, 8, 34, 2*7168, WS_CS)
    e("s_mov_b32 m0, s45\ns_nop 0\nbuffer_load_dword v11, s[8:11], s43 offen lds")
    def issue(ch):
        for i in range(4):
            e(f"s_add_u32 m0, s44, {ch*16384 + i*1024}\ns_add_u32 s30, s42, {(64*ch + 4*i)*3584}")
            e("buffer_load_dwordx4 v10, s[4:7], s30 offen lds")
    issued = 2
    issue(0); issue(1)
    for ch in range(7):
        e(f"s_waitcnt vmcnt({4*(issued-ch-1)})")
        if ch in (0, 1, 6): sl()
        e("s_barrier")
        while issued < min(7, ch + 5):
            issue(issued); issued += 1
    sl.flush(name, 'l')
    e("s_endpgm")
    e(f"{name}_compute:")
    st = Stamp(e, 36); st.n = 1
    e("v_lshlrev_b32 v24, 4, v0\nv_and_b32 v15, 31, v0\nv_lshrrev_b32 v12, 5, v0")
    e("s_lshl_b32 s51, s25, 2\ns_add_u32 s51, s51, s24\ns_mul_i32 s43, s51, 28672\ns_lshl_b32 s42, s51, 8\nv_lshlrev_b32 v16, 3, v15")
    e("s_waitcnt lgkmcnt(0)")
    srd(e, 8, 34, 64*28*1024, WS_H); srd(e, 16, 34, 7*2048*8, WS_STAT); srd(e, 12, 34, 64*112*1024, WS_G)
    for n in range(28):
        if n % 4 == 0: e(f"s_add_u32 s30, s43, {n*1024}")
        e(f"buffer_load_dwordx4 {vr(B_+4*n,4)}, v24, s[8:11], s30 offen offset:{(n%4)*1024}")
        if n == 3:
            for c in range(7):
                e(f"s_add_u32 s31, s42, {c*16384}\nbuffer_load_dwordx2 {vr(ST_+2*c,2)}, v16, s[16:19], s31 offen")
    e("v_bfe_u32 v11, v0, 4, 1\nv_bfe_u32 v13, v0, 2, 2\nv_and_b32 v14, 3, v0")
    e("v_lshl_add_u32 v17, v12, 2, v13\nv_lshlrev_b32 v17, 8, v17\nv_and_b32 v18, 1, v14\nv_lshl_add_u32 v17, v18, 3, v17")
    e("v_lshrrev_b32 v18, 1, v14\nv_lshl_add_u32 v18, v11, 1, v18\nv_lshlrev_b32 v19, 2, v13")
    for fb in range(4):
        e(f"v_add_u32 v20, {4*fb}, v18\nv_xor_b32 v20, v20, v19\nv_lshl_add_u32 v{2+2*fb}, v20, 4, v17\nv_add_u32 v{3+2*fb}, 0x10000, v{2+2*fb}")
    def reads(n):
        ch, s = n >> 2, n & 3; o = ch*16384 + s*4096; hi = o >> 16; o &= 65535; p = A_ + 16*(n & 1); r = []
        for fb in range(4):
            r.append(f"ds_read_b64_tr_b16 {vr(p+4*fb,2)}, v{2+2*fb+hi} offset:{o}")
            r.append(f"ds_read_b64_tr_b16 {vr(p+4*fb+2,2)}, v{2+2*fb+hi} offset:{o+2048}")
        return r
    st()
    e("s_barrier")
    st()
    for x in reads(0): e(x)
    for n in range(28):
        p = A_ + 16*(n & 1)
        e(f"s_waitcnt vmcnt({min(27-n, 24) if n < 4 else 27-n}) lgkmcnt(0)")
        nxt = reads(n+1) if n < 27 else []
        if nxt and (n+1) % 4 == 0: e("s_barrier")
        for fb in range(4):
            d = vr(ACC+16*fb, 16)
            e(f"v_mfma_f32_32x32x16_bf16 {d}, {vr(p+4*fb,4)}, {vr(B_+4*n,4)}, {'0' if n == 0 else d}")
            if fb < 3:
                for x in nxt[3*fb:3*fb+3 if fb < 2 else 8]: e(x)
    st()
    for c in range(1, 7): e(f"v_pk_add_f32 {vr(ST_,2)}, {vr(ST_,2)}, {vr(ST_+2*c,2)}")
    R, M = ST_, ST_+1
    e(f"s_mov_b32 s29, 0x3b124925\nv_mul_f32 v{M}, s29, v{M}\nv_mul_f32 v{ST_+2}, s29, v{R}")
    e(f"v_fma_f32 v{R}, -v{ST_+2}, v{ST_+2}, v{M}\nv_max_f32 v{R}, 0, v{R}\nv_add_f32 v{R}, 0x3727c5ac, v{R}\nv_rsq_f32 v{R}, v{R}\ns_nop 0")
    e(f"v_mul_f32 v{M}, v{ST_+2}, v{R}")
    e("s_mov_b32 s56, 0xc0135761\ns_mov_b32 s57, 0xbdd2d3e8")
    e(f"v_lshlrev_b32 v18, 4, v12\nv_add_u32 v18, {CSL}, v18")
    CS, BI, U, W, PK = B_, B_+16, B_+32, B_+48, B_+64
    rm = vr(ST_, 2)
    for fb in range(4):
        a = ACC + 16*fb
        for q in range(4):
            e(f"ds_read_b128 {vr(CS+4*q,4)}, v18 offset:{fb*128+32*q}\nds_read_b128 {vr(BI+4*q,4)}, v18 offset:{512+fb*128+32*q}")
        e("s_waitcnt lgkmcnt(0)")
        P = lambda b, r: vr(b+r, 2)
        rs = range(0, 16, 2)
        for r in rs: e(f"v_pk_fma_f32 {P(BI,r)}, {P(CS,r)}, {rm}, {P(BI,r)} op_sel:[0,1,0] op_sel_hi:[1,1,1] neg_lo:[1,0,0] neg_hi:[1,0,0]")
        for r in rs: e(f"v_pk_fma_f32 {P(a,r)}, {P(a,r)}, {rm}, {P(BI,r)} op_sel_hi:[1,0,1]")
        for r in rs: e(f"v_pk_mul_f32 {P(U,r)}, {P(a,r)}, {P(a,r)}")
        for r in rs: e(f"v_pk_fma_f32 {P(U,r)}, {P(U,r)}, s[56:57], s[56:57] op_sel:[0,1,0] op_sel_hi:[1,1,0]")
        for r in rs: e(f"v_pk_mul_f32 {P(U,r)}, {P(U,r)}, {P(a,r)}")
        for r in range(16): e(f"v_exp_f32 v{W+r}, v{U+r}")
        for r in rs: e(f"v_pk_add_f32 {P(W,r)}, {P(W,r)}, 1.0 op_sel_hi:[1,0]")
        for r in range(16): e(f"v_rcp_f32 v{W+r}, v{W+r}")
        for r in rs: e(f"v_pk_mul_f32 {P(a,r)}, {P(a,r)}, {P(W,r)}")
        k = PK + 8*(fb & 1)
        for i in range(8): e(f"v_cvt_pk_bf16_f32 v{k+i}, v{a+2*i}, v{a+2*i+1}")
        e(f"s_mul_i32 s29, s51, 112\ns_lshl_b32 s30, s26, 3\ns_add_u32 s29, s29, s30\ns_add_u32 s29, s29, {2*fb}\ns_lshl_b32 s55, s29, 10")
        e(f"buffer_store_dwordx4 {vr(k,4)}, v24, s[12:15], s55 offen\nbuffer_store_dwordx4 {vr(k+4,4)}, v24, s[12:15], s55 offen offset:1024")
    st.flush(name, 'c')
    e(f"{name}_end:\ns_endpgm")
    return e.text()

def gen_side(e, name):
    e(f"{name}_side:")
    e(f"s_cmp_ge_u32 s2, 220\ns_cbranch_scc1 {name}_end")
    load_ptr(e, 32, 'w1'); load_ptr(e, 34, 'ws'); load_ptr(e, 36, 'b1')
    e("s_sub_u32 s25, s2, 192\nv_lshrrev_b32 v2, 3, v0\nv_and_b32 v3, 7, v0\ns_waitcnt lgkmcnt(0)")
    srd(e, 4, 32, 448*3584); srd(e, 8, 34, 2*7168, WS_CS); srd(e, 12, 36, 3584)
    e("v_mul_u32_u24 v4, 3584, v2\nv_lshl_add_u32 v4, v3, 4, v4\ns_lshl_b32 s26, s25, 7")
    for i in range(7):
        e(f"s_add_u32 s30, s26, {64*i*3584}\nbuffer_load_dwordx4 {vr(32+4*i,4)}, v4, s[4:7], s30 offen")
    e("v_lshlrev_b32 v6, 1, v0\nbuffer_load_ushort v7, v6, s[12:15], s26 offen")
    for r in range(8): e(f"v_mov_b32 v{16+r}, 0")
    for i in range(7):
        e(f"s_waitcnt vmcnt({7-i})")
        unpack_bf16(e, 64, 32+4*i, 4)
        for r in range(0, 8, 2): e(f"v_pk_add_f32 {vr(16+r,2)}, {vr(16+r,2)}, {vr(64+r,2)}")
    e("v_lshlrev_b32 v5, 5, v0\nds_write_b128 v5, v[16:19]\nds_write_b128 v5, v[20:23] offset:16\ns_waitcnt lgkmcnt(0)\ns_barrier")
    e("v_and_b32 v8, 63, v0\nv_lshrrev_b32 v9, 6, v0\nv_lshlrev_b32 v5, 2, v8\nv_lshl_add_u32 v5, v9, 11, v5")
    for k in range(8): e(f"ds_read_b32 v{16+k}, v5 offset:{256*k}")
    e("s_waitcnt lgkmcnt(0)")
    for k in range(1, 8): e(f"v_add_f32 v16, v16, v{16+k}")
    e("s_barrier\nv_lshlrev_b32 v5, 2, v0\nds_write_b32 v5, v16\ns_waitcnt lgkmcnt(0)\ns_barrier")
    e(f"v_cmp_gt_u32 vcc, 64, v0\ns_and_saveexec_b64 s[50:51], vcc\ns_cbranch_execz {name}_end")
    for k in range(8): e(f"ds_read_b32 v{16+k}, v5 offset:{256*k}")
    e("s_waitcnt vmcnt(0) lgkmcnt(0)")
    for k in range(1, 8): e(f"v_add_f32 v16, v16, v{16+k}")
    e("v_lshlrev_b32 v7, 16, v7\ns_lshl_b32 s26, s25, 8\ns_add_u32 s30, s26, 7168")
    e("buffer_store_dword v16, v5, s[8:11], s26 offen\nbuffer_store_dword v7, v5, s[8:11], s30 offen\ns_endpgm")
```

```python
from common import *
import os
PERM = int(os.environ.get('PERM','0'))

Q, O, S, P, KV = 32, 64, 128, 160, 176
MX = 224
RED = 0
XCH = 131072
FLAG = XCH + 4096
QL = XCH + 4096 + 256

def kv(kb): return KV + 16*(kb % 3)

def load_kv(e, kb):
    b = kv(kb)
    e(f"s_add_u32 s30, s42, {kb*2048}")
    e(f"buffer_load_dwordx4 {vr(b,4)}, v1, s[4:7], s30 offen")
    e(f"buffer_load_dwordx4 {vr(b+4,4)}, v1, s[4:7], s30 offen offset:1024")
    e(f"s_add_u32 s30, s30, {2*MB}")
    e(f"buffer_load_dwordx4 {vr(b+8,4)}, v1, s[4:7], s30 offen")
    e(f"buffer_load_dwordx4 {vr(b+12,4)}, v1, s[4:7], s30 offen offset:1024")

def mfma(d, a, b, c):
    return f"v_mfma_f32_32x32x16_bf16 {vr(d,16)}, {vr(a,4)}, {vr(b,4)}, {c}"

def main_pass(e, sub, st=None):
    load_kv(e, 0); load_kv(e, 1)
    for r in range(64): e(f"v_mov_b32 v{O+r}, 0")
    if not sub:
        e(f"s_waitcnt vmcnt(8)\ns_barrier\nv_add_u32 v2, {QL}, v1")
        for k in range(8): e(f"ds_read_b128 {vr(Q+4*k,4)}, v2 offset:{k*1024}")
    def qk(n):
        kb, qb = n >> 2, n & 3; s = S + 16*(n & 1)
        return [mfma(s, kv(kb), Q+8*qb, "0"), mfma(s, kv(kb)+4, Q+8*qb+4, vr(s,16))]
    def pv(n):
        kb, qb = n >> 2, n & 3; p = P + 8*(n & 1); o = O + 16*qb
        return [mfma(o, kv(kb)+8, p, vr(o,16)), mfma(o, kv(kb)+12, p+4, vr(o,16))]
    def valu(n):
        s = S + 16*(n & 1); p = P + 8*(n & 1); qb = n & 3; g = []
        for k in range(4):
            x = []
            if sub: x += [f"v_sub_f32 v{s+4*k+i}, v{s+4*k+i}, v{MX+qb}" for i in range(4)]
            x += [f"v_exp_f32 v{s+4*k+i}, v{s+4*k+i}" for i in range(4)]
            if PERM: x += [f"v_perm_b32 v{p+2*k+i}, v{s+4*k+2*i+1}, v{s+4*k+2*i}, s54" for i in range(2)]
            else: x += [f"v_cvt_pk_bf16_f32 v{p+2*k+i}, v{s+4*k+2*i}, v{s+4*k+2*i+1}" for i in range(2)]
            g.append(x)
        return g
    e("s_waitcnt vmcnt(6) lgkmcnt(0)")
    if st: st()
    for x in qk(0): e(x)
    e("s_nop 7\ns_nop 3")
    for n in range(32):
        if n == 1: e("s_waitcnt vmcnt(4)")
        if (n+1) % 4 == 0 and n+1 < 32:
            e(f"s_waitcnt vmcnt({4 if (n+1)//4 < 7 else 0})")
        m = (qk(n+1) if n+1 < 32 else [None, None]) + (pv(n-1) if n else [None, None])
        g = valu(n)
        for k in range(4):
            if m[k]: e(m[k])
            for x in g[k]: e(x)
        if n % 4 == 1 and n//4 + 2 < 8:
            load_kv(e, n//4 + 2)
        if n == 27 and not sub:
            e("buffer_load_dwordx4 v[228:231], v1, s[12:15], s55 offen")
    e("s_nop 1")
    for x in pv(31): e(x)

def reduce_store(e, name):
    e("s_lshl_b32 s29, s24, 14\nv_add_u32 v2, s29, v1\ns_nop 7")
    for qb in range(4):
        for q in range(4):
            e(f"ds_write_b128 v2, {vr(O+16*qb+4*q,4)} offset:{qb*4096+q*1024}")
    e("s_waitcnt lgkmcnt(0)\ns_barrier")
    e("s_lshr_b32 s48, s24, 1\ns_and_b32 s49, s24, 1")
    e("s_lshl_b32 s29, s48, 12\ns_lshl_b32 s30, s49, 11\ns_add_u32 s30, s30, s29\nv_add_u32 v2, s30, v1")
    e("v_add_u32 v3, 0x10000, v2")
    e("v_and_b32 v4, 31, v0\nv_lshlrev_b32 v4, 4, v4\ns_add_u32 s29, s29, 3584\nv_add_u32 v4, s29, v4\nv_add_u32 v5, 0x10000, v4")
    for w in range(8):
        for q in range(2):
            e(f"ds_read_b128 {vr(O+8*w+4*q,4)}, v{2+(w>>2)} offset:{(w&3)*16384+q*1024}")
        e(f"ds_read_b32 v{S+w}, v{4+(w>>2)} offset:{(w&3)*16384}")
        if w == 3: e("s_waitcnt lgkmcnt(6)")
    e("s_waitcnt lgkmcnt(0)")
    for st in (4, 2, 1):
        for w in range(st):
            for r in range(0, 8, 2):
                e(f"v_pk_add_f32 {vr(O+8*w+r,2)}, {vr(O+8*w+r,2)}, {vr(O+8*(w+st)+r,2)}")
            e(f"v_add_f32 v{S+w}, v{S+w}, v{S+w+st}")
    e(f"v_rcp_f32 v{S+1}, v{S}")
    e(f"v_cmp_le_f32 vcc, 0x21800000, v{S}\nv_cmp_ge_f32 s[50:51], s44, v{S}")
    for r in range(8):
        e(f"v_mul_f32 v{O+r}, v{O+r}, v{S+1}")
    e("s_and_b64 s[50:51], s[50:51], vcc")
    e("s_cmp_eq_u32 s49, 1\ns_cselect_b64 s[52:53], s[46:47], 0")
    for r in range(4, 8):
        e(f"v_cndmask_b32 v{O+r}, v{O+r}, 0, s[52:53]")
    for i in range(4):
        e(f"v_cvt_pk_bf16_f32 v{P+i}, v{O+2*i}, v{O+2*i+1}")
    e("s_lshl_b32 s29, s26, 2\ns_add_u32 s29, s29, s48\ns_lshl_b32 s29, s29, 5")
    e("s_lshl_b32 s30, s25, 1\ns_add_u32 s29, s29, s30\ns_add_u32 s29, s29, s49\ns_lshl_b32 s29, s29, 10")
    e(f"buffer_store_dwordx4 {vr(P,4)}, v1, s[8:11], s29 offen")

def gen_attn(name):
    e = Em()
    kernel_head(e, name)
    st = Stamp(e, 12); st()
    e(f"s_cmp_ge_u32 s2, 256\ns_cbranch_scc1 {name}_end")
    load_ptr(e, 34, 'ws'); load_ptr(e, 36, 'w2'); load_ptr(e, 38, 'wo')
    e("v_lshrrev_b32 v1, 6, v0\nv_and_b32 v0, 63, v0\ns_nop 0\nv_readfirstlane_b32 s24, v1")
    e("s_and_b32 s27, s2, 7\ns_lshr_b32 s28, s2, 3\ns_and_b32 s25, s28, 1\ns_lshl_b32 s27, s27, 1")
    e("s_add_u32 s25, s25, s27\ns_lshr_b32 s26, s28, 1")
    e("s_mov_b32 s46, 0\ns_mov_b32 s47, -1\ns_mov_b32 s44, 0x5d800000\ns_mov_b32 s45, 0\ns_mov_b32 s54, 0x07060302")
    e("v_lshlrev_b32 v1, 4, v0")
    e("s_waitcnt lgkmcnt(0)")
    srd(e, 4, 34, 6*MB, WS_Q); srd(e, 8, 34, 2*MB, WS_O)
    e(f"s_or_b32 s29, s2, s24\ns_cmp_lg_u32 s29, 0\ns_cbranch_scc1 {name}_nz")
    srd(e, 12, 34, 4096, WS_CNT)
    e("v_lshlrev_b32 v2, 7, v0\nv_mov_b32 v3, 0\nbuffer_store_dword v3, v2, s[12:15], 0 offen\ns_waitcnt vmcnt(0)")
    e(f"{name}_nz:")
    e("s_lshl_b32 s55, s2, 3\ns_add_u32 s55, s55, s24\ns_cmp_lt_u32 s55, 1568")
    e("s_cselect_b32 s12, s36, s38\ns_cselect_b32 s13, s37, s39\ns_mov_b32 s29, 401408\ns_cselect_b32 s14, 1605632, s29\ns_mov_b32 s15, 0x00020000")
    e("s_cselect_b32 s29, 0, 1568\ns_sub_u32 s55, s55, s29\ns_lshl_b32 s55, s55, 10")
    e("s_lshl_b32 s29, s25, 6\ns_lshl_b32 s30, s26, 2\ns_add_u32 s30, s30, s29\ns_lshl_b32 s43, s30, 11")
    e(f"s_lshl_b32 s30, s24, 3\ns_add_u32 s30, s30, s29\ns_lshl_b32 s42, s30, 11\ns_add_u32 s42, s42, {WS_K}")
    e(f"s_lshl_b32 s29, s24, 10\ns_add_u32 m0, s29, {QL}\ns_add_u32 s30, s43, s29")
    e("buffer_load_dwordx4 v1, s[4:7], s30 offen lds")
    e(f"v_mov_b32 v2, {FLAG}\nv_mov_b32 v3, 0\nds_write_b32 v2, v3")
    main_pass(e, False, st)
    st()
    e(f"{name}_reduce:")
    reduce_store(e, name)
    st.flush(name, 'a')
    e(f"s_cmp_eq_u32 s45, 1\ns_cbranch_scc1 {name}_end")
    e(f"v_mov_b32 v2, {FLAG}\nv_mov_b32 v3, 1")
    e(f"s_cmp_eq_u64 s[50:51], -1\ns_cbranch_scc1 {name}_ok\nds_write_b32 v2, v3\n{name}_ok:")
    e("s_waitcnt lgkmcnt(0)\ns_barrier\nds_read_b32 v3, v2\ns_waitcnt lgkmcnt(0)\ns_nop 0")
    e(f"v_readfirstlane_b32 s29, v3\ns_nop 3\ns_cmp_eq_u32 s29, 0\ns_cbranch_scc1 {name}_end")
    e("s_mov_b32 s45, 1\ns_waitcnt vmcnt(0)")
    for qb in range(4): e(f"v_mov_b32 v{MX+qb}, 0xff800000")
    e("s_mov_b32 s48, 0")
    e(f"{name}_mx:")
    e("s_lshl_b32 s30, s48, 11\ns_add_u32 s30, s30, s42")
    e(f"buffer_load_dwordx4 {vr(KV,4)}, v1, s[4:7], s30 offen")
    e(f"buffer_load_dwordx4 {vr(KV+4,4)}, v1, s[4:7], s30 offen offset:1024")
    e("s_waitcnt vmcnt(0)")
    for qb in range(4):
        e(mfma(S, KV, Q+8*qb, "0")); e(mfma(S, KV+4, Q+8*qb+4, vr(S,16)))
        e("s_nop 7\ns_nop 7")
        for r in range(0, 16, 2):
            e(f"v_max3_f32 v{MX+qb}, v{MX+qb}, v{S+r}, v{S+r+1}")
        e("s_nop 7")
    e(f"s_add_u32 s48, s48, 1\ns_cmp_lt_u32 s48, 8\ns_cbranch_scc1 {name}_mx")
    e(f"s_lshl_b32 s29, s24, 9\ns_add_u32 s29, s29, {XCH}\nv_and_b32 v4, 31, v0\nv_lshlrev_b32 v4, 2, v4\nv_add_u32 v2, s29, v4")
    for qb in range(4):
        swap_add(e, MX+qb, 3, "v_max_f32")
        e(f"ds_write_b32 v2, v{MX+qb} offset:{qb*128}")
    e(f"s_waitcnt lgkmcnt(0)\ns_barrier\nv_add_u32 v2, {XCH}, v4")
    for qb in range(4):
        for w in range(8):
            e(f"ds_read_b32 v{S+w}, v2 offset:{w*512+qb*128}")
        e("s_waitcnt lgkmcnt(0)")
        e(f"v_max3_f32 v{MX+qb}, v{S}, v{S+1}, v{S+2}\nv_max3_f32 v{MX+qb}, v{MX+qb}, v{S+3}, v{S+4}")
        e(f"v_max3_f32 v{MX+qb}, v{MX+qb}, v{S+5}, v{S+6}\nv_max_f32 v{MX+qb}, v{MX+qb}, v{S+7}")
    main_pass(e, True)
    e(f"s_branch {name}_reduce")
    e(f"{name}_end:")
    e("s_endpgm")
    return e.text()
```

```python
MAIN = "sequential_preLN__mha_block__dense_activation_gelu__prompt_kernel"
MB = 1 << 20
WS_Q, WS_K, WS_V, WS_O, WS_H, WS_G = 0, 2*MB, 4*MB, 6*MB, 8*MB, 10*MB
WS_CNT = 19*MB
ARG = dict(x=0, wqkv=8, wo=16, w1=32, b1=40, w2=48, b2=56, out=64, dbg=72, ws=80)

class Em:
    def __init__(self):
        self.l = []
    def __call__(self, s):
        for x in s.split("\n"):
            x = x.strip()
            if x:
                self.l.append(x if x.endswith(":") else "    " + x)
    def text(self):
        return "\n".join(self.l) + "\n"

def vr(b, n=1):
    return f"v{b}" if n == 1 else f"v[{b}:{b+n-1}]"
def sr(b, n=1):
    return f"s{b}" if n == 1 else f"s[{b}:{b+n-1}]"

def kernel_head(e, name):
    e.l.append(f".globl {name}\n.p2align 8\n.type {name},@function")
    e(f"{name}:")

def kernel_desc(name, vgpr=256):
    acc = (vgpr + 3) // 4 * 4
    return f""".p2align 6
.amdhsa_kernel {name}
  .amdhsa_next_free_vgpr {vgpr}
  .amdhsa_next_free_sgpr 96
  .amdhsa_accum_offset {acc}
  .amdhsa_group_segment_fixed_size 0
  .amdhsa_kernarg_size 88
  .amdhsa_user_sgpr_count 2
  .amdhsa_user_sgpr_kernarg_segment_ptr 1
  .amdhsa_system_sgpr_workgroup_id_x 1
.end_amdhsa_kernel
"""

def load_ptr(e, sdst, arg):
    e(f"s_load_dwordx2 {sr(sdst,2)}, s[0:1], {ARG[arg]}")

def srd(e, d, pbase, nbytes, off=0):
    if off:
        e(f"s_add_u32 s{d}, s{pbase}, {off}")
        e(f"s_addc_u32 s{d+1}, s{pbase+1}, 0")
    else:
        e(f"s_mov_b32 s{d}, s{pbase}")
        e(f"s_mov_b32 s{d+1}, s{pbase+1}")
    e(f"s_mov_b32 s{d+2}, {nbytes}")
    e(f"s_mov_b32 s{d+3}, 0x00020000")

def swap_add(e, v, t, op="v_add_f32"):
    e(f"v_mov_b32 v{t}, v{v}")
    e("s_nop 1")
    e(f"v_permlane32_swap_b32 v{v}, v{t}")
    e("s_nop 1")
    e(f"{op} v{v}, v{v}, v{t}")

def unpack_bf16(e, dst, src, n):
    for i in range(n):
        e(f"v_and_b32 v{dst+2*i+1}, 0xffff0000, v{src+i}")
        e(f"v_lshlrev_b32 v{dst+2*i}, 16, v{src+i}")

import os
PROF = int(os.environ.get("PROF", "0"))
PWG = int(os.environ.get("PWG", "0"))
MT = "s_memrealtime" if PROF == 2 else "s_memtime"
class Stamp:
    def __init__(self, e, base): self.e, self.base, self.n = e, base, 0
    def __call__(self):
        if _P():
            self.e(f"{MT} s[{60+2*self.n}:{61+2*self.n}]"); self.n += 1
    def flush(self, name, tag):
        if not _P(): return
        e = self.e
        e(f"s_waitcnt vmcnt(0) lgkmcnt(0)\n{MT} s[{60+2*self.n}:{61+2*self.n}]"); self.n += 1
        e(f"s_cmp_lg_u32 s2, {PWG}\ns_cbranch_scc1 {name}_nf{tag}")
        e(f"s_and_b32 s29, s24, 7\ns_cmp_lg_u32 s29, 0\ns_cbranch_scc1 {name}_nf{tag}")
        e("s_load_dwordx2 s[80:81], s[0:1], 72\ns_waitcnt lgkmcnt(0)\ns_mov_b32 s82, 256\ns_mov_b32 s83, 0x20000")
        for i in range(1, self.n):
            e(f"s_sub_u32 s29, s{60+2*i}, s60\nv_mov_b32 v1, s29\nv_mov_b32 v2, {4*(self.base+i)}")
            e("buffer_store_dword v1, v2, s[80:83], 0 offen")
        e(f"s_waitcnt vmcnt(0)\n{name}_nf{tag}:")
def _P():
    import common
    return common.PROF
```

```python
from common import *
from t2 import ACC, BR, AF_, AUX, T, WS_STAT, LST
import t1b
from t1b import A_, B_, ST_, WS_CS
CSL = 135168

def phase_t2(e, name, kind, st=None):
    wo = kind == 'wo'
    nb, ns, wr = (2, 32, 28) if wo else (7, 112, 32)
    e("v_lshrrev_b32 v2, 3, v0\nv_and_b32 v3, 7, v0\nv_bfe_u32 v4, v0, 4, 1\nv_lshlrev_b32 v4, 2, v4\nv_xor_b32 v3, v3, v4")
    e("v_mul_u32_u24 v2, 896, v2\nv_lshl_add_u32 v10, v3, 4, v2\nv_lshlrev_b32 v11, 4, v0")
    e(f"s_mul_i32 s42, s24, {wr*896}\ns_lshl_b32 s30, s26, 7\ns_add_u32 s42, s42, s30")
    e(f"s_mul_i32 s43, s25, {2*ns*1024}\ns_lshl_b32 s30, s24, 11\ns_add_u32 s43, s43, s30\ns_lshl_b32 s44, s24, 14")
    srd(e, 4, 32 if wo else 84, 448*896 if wo else 1792*896)
    srd(e, 8, 34, 64*ns*1024, WS_O if wo else WS_G)
    ops = []
    def issue(i, dma=True):
        for j in range(4 if dma else 0):
            ops.append(i)
            e(f"s_add_u32 m0, s44, {(i%4)*4096 + j*1024}\ns_add_u32 s30, s42, {(8*wr*i + 8*j)*896}")
            e("buffer_load_dwordx4 v10, s[4:7], s30 offen lds")
        for sp in range(2):
            for tb in range(2):
                ops.append(i)
                e(f"s_add_u32 s30, s43, {(tb*ns + 16*i + sp)*1024}")
                e(f"buffer_load_dwordx4 {vr(BR+16*(i%4)+8*sp+4*tb,4)}, v11, s[8:11], s30 offen{'' if wo else ' sc1'}")
    issued = min(nb, 4)
    for i in range(issued): issue(i, wo)
    e("v_lshrrev_b32 v12, 5, v0\nv_and_b32 v15, 31, v0")
    e("s_lshr_b32 s48, s24, 2\ns_bfe_u32 s50, s24, 0x10001\ns_and_b32 s53, s24, 1")
    e("s_lshl_b32 s29, s25, 1\ns_add_u32 s51, s29, s50\ns_lshl_b32 s29, s26, 1\ns_add_u32 s49, s29, s48")
    e("s_lshl_b32 s29, s51, 5\nv_add_u32 v16, s29, v15\nv_mul_u32_u24 v16, 896, v16\nv_lshl_add_u32 v16, v12, 3, v16")
    e("s_lshl_b32 s52, s49, 6\ns_lshl_b32 s29, s53, 5\ns_add_u32 s52, s52, s29")
    e("s_mul_i32 s29, s51, 28\ns_lshl_b32 s30, s49, 1\ns_add_u32 s29, s29, s30\ns_add_u32 s29, s29, s53\ns_lshl_b32 s55, s29, 10")
    if wo:
        srd(e, 12, 34, 64*28*1024, WS_H); srd(e, 20, 36, 2048*896); srd(e, 16, 34, 7*2048*8, WS_STAT)
        for q in range(2):
            e(f"buffer_load_dwordx2 {vr(AUX+2*q,2)}, v16, s[20:23], s52 offen offset:{16*q}")
        ops.extend([-1]*2)
    else:
        srd(e, 12, 40, 2048*896); srd(e, 16, 38, 896)
        e("v_lshlrev_b32 v17, 3, v12")
        for q in range(2):
            e(f"buffer_load_dwordx2 {vr(AUX+4+2*q,2)}, v17, s[16:19], s52 offen offset:{16*q}")
        ops.extend([-1]*2)
    e("v_bfe_u32 v13, v0, 2, 2\nv_and_b32 v14, 3, v0\nv_bfe_u32 v18, v0, 4, 1")
    e("v_lshl_add_u32 v19, v12, 2, v13\nv_lshlrev_b32 v19, 7, v19\nv_add_u32 v19, s44, v19")
    e("v_and_b32 v20, 1, v14\nv_lshl_add_u32 v19, v20, 3, v19\nv_lshrrev_b32 v20, 1, v14\nv_lshl_add_u32 v20, v18, 1, v20")
    e("v_lshrrev_b32 v21, 1, v13\nv_lshlrev_b32 v21, 2, v21")
    e("v_xor_b32 v22, v20, v21\nv_lshl_add_u32 v2, v22, 4, v19\nv_add_u32 v20, 4, v20\nv_xor_b32 v22, v20, v21\nv_lshl_add_u32 v4, v22, 4, v19")
    for i in range(nb):
        later = len(ops) - 1 - max(k for k, b in enumerate(ops) if b == i)
        e(f"s_waitcnt vmcnt({later})")
        for sp in range(2):
            for fb in range(2):
                o = (i % 4)*4096 + sp*2048
                e(f"ds_read_b64_tr_b16 {vr(AF_+8*sp+4*fb,2)}, v{2+2*fb} offset:{o}")
                e(f"ds_read_b64_tr_b16 {vr(AF_+8*sp+4*fb+2,2)}, v{2+2*fb} offset:{o+1024}")
        for sp in range(2):
            e(f"s_waitcnt lgkmcnt({4 if sp == 0 else 0})")
            for fb in range(2):
                for tb in range(2):
                    d = vr(ACC+16*(2*fb+tb), 16)
                    e(f"v_mfma_f32_32x32x16_bf16 {d}, {vr(AF_+8*sp+4*fb,4)}, {vr(BR+16*(i%4)+8*sp+4*tb,4)}, {'0' if i == 0 and sp == 0 else d}")
        if issued < nb:
            issue(issued); issued += 1
    if st: st()
    e("v_add_u32 v17, s44, v11\ns_nop 7")
    for b in range(4):
        for q in range(4):
            e(f"ds_write_b128 v17, {vr(ACC+16*b+4*q,4)} offset:{b*4096+q*1024}")
    e("s_waitcnt lgkmcnt(0)\ns_barrier")
    e("s_lshl_b32 s29, s24, 11\nv_add_u32 v17, s29, v11\nv_add_u32 v18, 0x10000, v17")
    for w in range(8):
        for q in range(2):
            e(f"ds_read_b128 {vr(ACC+8*w+4*q,4)}, v{17+(w>>2)} offset:{(w&3)*16384+q*1024}")
    e("s_waitcnt vmcnt(0)")
    if wo:
        unpack_bf16(e, T, AUX, 4)
    else:
        unpack_bf16(e, T, 26, 4); unpack_bf16(e, T+8, AUX+4, 4)
        for r in range(0, 8, 2): e(f"v_pk_add_f32 {vr(T+r,2)}, {vr(T+r,2)}, {vr(T+8+r,2)}")
    e("s_waitcnt lgkmcnt(0)")
    for s_ in (4, 2, 1):
        for w in range(s_):
            for r in range(0, 8, 2):
                e(f"v_pk_add_f32 {vr(ACC+8*w+r,2)}, {vr(ACC+8*w+r,2)}, {vr(ACC+8*(w+s_)+r,2)}")
    for r in range(0, 8, 2): e(f"v_pk_add_f32 {vr(ACC+r,2)}, {vr(ACC+r,2)}, {vr(T+r,2)}")
    for i in range(4): e(f"v_cvt_pk_bf16_f32 v{T+16+i}, v{ACC+2*i}, v{ACC+2*i+1}")
    if wo:
        e(f"buffer_store_dwordx4 {vr(T+16,4)}, v11, s[12:15], s55 offen sc1")
        for k in range(4): e(f"v_mov_b32 v{26+k}, v{T+16+k}")
        unpack_bf16(e, ACC, T+16, 4)
        e(f"v_add_f32 v{T}, v{ACC}, v{ACC+1}\nv_mul_f32 v{T+1}, v{ACC}, v{ACC}\nv_fmac_f32 v{T+1}, v{ACC+1}, v{ACC+1}")
        for r in range(2, 8):
            e(f"v_add_f32 v{T}, v{T}, v{ACC+r}\nv_fmac_f32 v{T+1}, v{ACC+r}, v{ACC+r}")
        e(f"s_lshl_b32 s29, s24, 9\ns_add_u32 s29, s29, {LST}\nv_lshlrev_b32 v3, 3, v0\nv_add_u32 v3, s29, v3")
        e(f"ds_write_b64 v3, {vr(T,2)}\ns_waitcnt lgkmcnt(0)\ns_barrier")
        e(f"s_cmp_ge_u32 s24, 4\ns_cbranch_scc1 {name}_ldA\ns_cmp_lg_u32 s24, 0\ns_cbranch_scc1 {name}_done")
        e(f"v_lshlrev_b32 v3, 3, v15\nv_lshl_add_u32 v3, v12, 10, v3\nv_add_u32 v3, {LST}, v3")
        for k, o in enumerate((0, 256, 512, 768, 2048, 2304, 2560, 2816)):
            e(f"ds_read_b64 {vr(ACC+2*k,2)}, v3 offset:{o}")
        e("s_waitcnt lgkmcnt(0)")
        for k in range(1, 8): e(f"v_pk_add_f32 {vr(ACC,2)}, {vr(ACC,2)}, {vr(ACC+2*k,2)}")
        e(f"v_mov_b32 v4, v{ACC}\nv_mov_b32 v5, v{ACC+1}")
        e("s_lshl_b32 s29, s26, 11\ns_lshl_b32 s30, s25, 6\ns_add_u32 s29, s29, s30\ns_lshl_b32 s29, s29, 3\nv_lshlrev_b32 v3, 3, v0")
        e("buffer_store_dwordx2 v[4:5], v3, s[16:19], s29 offen sc1")
        e(f"{name}_done:")
    else:
        for q in range(2):
            e(f"buffer_store_dwordx2 {vr(T+16+2*q,2)}, v16, s[12:15], s52 offen offset:{16*q}")

def phase_b(e, name, st):
    e("v_lshlrev_b32 v24, 4, v0\nv_and_b32 v15, 31, v0\nv_lshrrev_b32 v12, 5, v0")
    e("s_lshl_b32 s51, s90, 2\ns_add_u32 s51, s51, s24\ns_mul_i32 s43, s51, 28672\ns_lshl_b32 s42, s51, 8\nv_lshlrev_b32 v16, 3, v15")
    srd(e, 8, 34, 64*28*1024, WS_H); srd(e, 16, 34, 7*2048*8, WS_STAT); srd(e, 12, 34, 64*112*1024, WS_G)
    for n in range(28):
        if n % 4 == 0: e(f"s_add_u32 s30, s43, {n*1024}")
        e(f"buffer_load_dwordx4 {vr(B_+4*n,4)}, v24, s[8:11], s30 offen offset:{(n%4)*1024} sc1")
        if n == 3:
            for c in range(7):
                e(f"s_add_u32 s31, s42, {c*16384}\nbuffer_load_dwordx2 {vr(ST_+2*c,2)}, v16, s[16:19], s31 offen sc1")
    e("v_bfe_u32 v11, v0, 4, 1\nv_bfe_u32 v13, v0, 2, 2\nv_and_b32 v14, 3, v0")
    e("v_lshl_add_u32 v17, v12, 2, v13\nv_lshlrev_b32 v17, 8, v17\nv_and_b32 v18, 1, v14\nv_lshl_add_u32 v17, v18, 3, v17")
    e("v_lshrrev_b32 v18, 1, v14\nv_lshl_add_u32 v18, v11, 1, v18\nv_lshlrev_b32 v19, 2, v13")
    for fb in range(4):
        e(f"v_add_u32 v20, {4*fb}, v18\nv_xor_b32 v20, v20, v19\nv_lshl_add_u32 v{2+2*fb}, v20, 4, v17\nv_add_u32 v{3+2*fb}, 0x10000, v{2+2*fb}")
    def reads(n):
        ch, s = n >> 2, n & 3; o = ch*16384 + s*4096; hi = o >> 16; o &= 65535; p = A_ + 16*(n & 1); r = []
        for fb in range(4):
            r.append(f"ds_read_b64_tr_b16 {vr(p+4*fb,2)}, v{2+2*fb+hi} offset:{o}")
            r.append(f"ds_read_b64_tr_b16 {vr(p+4*fb+2,2)}, v{2+2*fb+hi} offset:{o+2048}")
        return r
    e("s_barrier")
    for x in reads(0): e(x)
    for n in range(28):
        p = A_ + 16*(n & 1)
        e(f"s_waitcnt vmcnt({min(27-n, 24) if n < 4 else 27-n}) lgkmcnt(0)")
        nxt = reads(n+1) if n < 27 else []
        if nxt and (n+1) % 4 == 0: e("s_barrier")
        for fb in range(4):
            d = vr(ACC+16*fb, 16)
            e(f"v_mfma_f32_32x32x16_bf16 {d}, {vr(p+4*fb,4)}, {vr(B_+4*n,4)}, {'0' if n == 0 else d}")
            if fb < 3:
                for x in nxt[3*fb:3*fb+3 if fb < 2 else 8]: e(x)
    st()
    e("s_barrier")
    for c in range(1, 7): e(f"v_pk_add_f32 {vr(ST_,2)}, {vr(ST_,2)}, {vr(ST_+2*c,2)}")
    R, M = ST_, ST_+1
    e(f"s_mov_b32 s29, 0x3b124925\nv_mul_f32 v{M}, s29, v{M}\nv_mul_f32 v{ST_+2}, s29, v{R}")
    e(f"v_fma_f32 v{R}, -v{ST_+2}, v{ST_+2}, v{M}\nv_max_f32 v{R}, 0, v{R}\nv_add_f32 v{R}, 0x3727c5ac, v{R}\nv_rsq_f32 v{R}, v{R}\ns_nop 0")
    e(f"v_mul_f32 v{M}, v{ST_+2}, v{R}")
    e("s_mov_b32 s56, 0xc0135761\ns_mov_b32 s57, 0xbdd2d3e8")
    e(f"v_lshlrev_b32 v18, 4, v12\nv_add_u32 v18, {CSL}, v18")
    CS, BI, U, W, PK = B_, B_+16, B_+32, B_+48, B_+64
    rm = vr(ST_, 2)
    for fb in range(4):
        a = ACC + 16*fb
        for q in range(4):
            e(f"ds_read_b128 {vr(CS+4*q,4)}, v18 offset:{fb*128+32*q}\nds_read_b128 {vr(BI+4*q,4)}, v18 offset:{512+fb*128+32*q}")
        e("s_waitcnt lgkmcnt(0)")
        P = lambda b, r: vr(b+r, 2)
        rs = range(0, 16, 2)
        for r in rs: e(f"v_pk_fma_f32 {P(BI,r)}, {P(CS,r)}, {rm}, {P(BI,r)} op_sel:[0,1,0] op_sel_hi:[1,1,1] neg_lo:[1,0,0] neg_hi:[1,0,0]")
        for r in rs: e(f"v_pk_fma_f32 {P(a,r)}, {P(a,r)}, {rm}, {P(BI,r)} op_sel_hi:[1,0,1]")
        for r in rs: e(f"v_pk_mul_f32 {P(U,r)}, {P(a,r)}, {P(a,r)}")
        for r in rs: e(f"v_pk_fma_f32 {P(U,r)}, {P(U,r)}, s[56:57], s[56:57] op_sel:[0,1,0] op_sel_hi:[1,1,0]")
        for r in rs: e(f"v_pk_mul_f32 {P(U,r)}, {P(U,r)}, {P(a,r)}")
        for r in range(16): e(f"v_exp_f32 v{W+r}, v{U+r}")
        for r in rs: e(f"v_pk_add_f32 {P(W,r)}, {P(W,r)}, 1.0 op_sel_hi:[1,0]")
        for r in range(16): e(f"v_rcp_f32 v{W+r}, v{W+r}")
        for r in rs: e(f"v_pk_mul_f32 {P(a,r)}, {P(a,r)}, {P(W,r)}")
        k = PK + 8*(fb & 1)
        for i in range(8): e(f"v_cvt_pk_bf16_f32 v{k+i}, v{a+2*i}, v{a+2*i+1}")
        e(f"s_mul_i32 s29, s51, 112\ns_lshl_b32 s30, s91, 3\ns_add_u32 s29, s29, s30\ns_add_u32 s29, s29, {2*fb}\ns_lshl_b32 s55, s29, 10")
        e(f"buffer_store_dwordx4 {vr(k,4)}, v24, s[12:15], s55 offen sc1\nbuffer_store_dwordx4 {vr(k+4,4)}, v24, s[12:15], s55 offen offset:1024 sc1")

FLG = CSL + 1024

def signal_and_poll(e, name, tag, word, lds_flag):
    e(f"s_mov_b32 s31, 0\ns_cmp_lg_u32 s24, 0\ns_cbranch_scc1 {name}_o{tag}")
    e(f"s_lshl_b32 s29, s90, 7\ns_add_u32 s29, s29, {WS_CNT + 128*word}\nv_mov_b32 v2, s29\nv_mov_b32 v3, 1")
    e("s_mov_b64 exec, 1\nglobal_atomic_add v2, v3, s[34:35]")
    e(f"{name}_p{tag}:\nglobal_load_dword v4, v2, s[34:35] sc1\ns_add_u32 s31, s31, 1\ns_waitcnt vmcnt(0)")
    e(f"v_readfirstlane_b32 s30, v4\ns_nop 1\ns_cmp_ge_u32 s31, 0x100000\ns_cbranch_scc1 {name}_q{tag}")
    e(f"s_cmp_ge_u32 s30, 14\ns_cbranch_scc1 {name}_q{tag}\ns_sleep 3\ns_branch {name}_p{tag}")
    e(f"{name}_q{tag}:\ns_mov_b64 exec, -1")
    if lds_flag:
        e(f"v_mov_b32 v2, {FLG}\nds_write_b32 v2, v3\ns_waitcnt lgkmcnt(0)\ns_branch {name}_w{tag}")
        e(f"{name}_o{tag}:\nv_mov_b32 v2, {FLG}")
        e(f"{name}_l{tag}:\nds_read_b32 v4, v2\ns_add_u32 s31, s31, 1\ns_waitcnt lgkmcnt(0)")
        e(f"v_readfirstlane_b32 s30, v4\ns_nop 1\ns_cmp_ge_u32 s31, 0x1000000\ns_cbranch_scc1 {name}_w{tag}")
        e(f"s_cmp_eq_u32 s30, 1\ns_cbranch_scc1 {name}_w{tag}\ns_sleep 1\ns_branch {name}_l{tag}")
        e(f"{name}_w{tag}:")
    else:
        e(f"{name}_o{tag}:\ns_barrier")

def gen_mlp(name):
    e = Em(); kernel_head(e, name)
    st = Stamp(e, 40); st()
    e(f"s_cmp_ge_u32 s2, 224\ns_cbranch_scc1 {name}_end")
    for r, a in ((32,'wo'),(34,'ws'),(36,'x'),(38,'b2'),(40,'out'),(58,'w1'),(84,'w2')): load_ptr(e, r, a)
    e("v_lshrrev_b32 v1, 6, v0\nv_and_b32 v0, 63, v0\ns_and_b32 s27, s2, 7\nv_readfirstlane_b32 s24, v1\ns_lshr_b32 s28, s2, 3")
    e("s_and_b32 s29, s28, 1\ns_lshl_b32 s90, s27, 1\ns_add_u32 s90, s90, s29\ns_lshr_b32 s91, s28, 1")
    e("s_and_b32 s29, s91, 1\ns_lshl_b32 s92, s90, 1\ns_add_u32 s92, s92, s29\ns_lshr_b32 s93, s91, 1")
    e("s_mov_b32 s25, s92\ns_mov_b32 s26, s93\ns_waitcnt lgkmcnt(0)")
    e(f"v_mov_b32 v2, {FLG}\nv_mov_b32 v3, 0\nds_write_b32 v2, v3")
    phase_t2(e, name, 'wo')
    e("s_waitcnt vmcnt(0)")
    st()
    e("s_barrier")
    signal_and_poll(e, name, 'A', 0, True)
    st()
    e(f"s_branch {name}_cB")
    e(f"{name}_ldA:")
    e("s_sub_u32 s30, s24, 4\ns_lshl_b32 s44, s30, 12")
    e("v_lshrrev_b32 v2, 4, v0\nv_and_b32 v3, 15, v0\nv_lshlrev_b32 v4, 2, v2\nv_xor_b32 v3, v3, v4")
    e("v_mul_u32_u24 v2, 3584, v2\nv_lshl_add_u32 v10, v3, 4, v2\nv_lshlrev_b32 v11, 2, v0")
    e(f"s_mul_i32 s42, s30, {16*3584}\ns_lshl_b32 s31, s91, 8\ns_add_u32 s42, s42, s31")
    e("s_and_b32 s31, s30, 1\ns_lshl_b32 s31, s31, 8\ns_lshr_b32 s29, s30, 1\ns_mul_i32 s43, s29, 7168\ns_add_u32 s43, s43, s31")
    e(f"s_lshl_b32 s31, s91, 9\ns_add_u32 s43, s43, s31\ns_lshl_b32 s45, s30, 8\ns_add_u32 s45, s45, {CSL}")
    srd(e, 4, 58, 448*3584); srd(e, 8, 34, 2*7168, WS_CS)
    e("s_waitcnt vmcnt(0)\ns_barrier")
    e("s_mov_b32 m0, s45\ns_nop 0\nbuffer_load_dword v11, s[8:11], s43 offen lds")
    def issue(ch):
        for i in range(4):
            e(f"s_add_u32 m0, s44, {ch*16384 + i*1024}\ns_add_u32 s30, s42, {(64*ch + 4*i)*3584}")
            e("buffer_load_dwordx4 v10, s[4:7], s30 offen lds")
    issued = 3
    for ch in range(issued): issue(ch)
    for ch in range(7):
        e(f"s_waitcnt vmcnt({4*(issued-ch-1)})\ns_barrier")
        while issued < min(7, ch + 5): issue(issued); issued += 1
    e("s_barrier")
    srd(e, 4, 84, 1792*896)
    e("v_lshrrev_b32 v2, 3, v0\nv_and_b32 v3, 7, v0\nv_bfe_u32 v4, v0, 4, 1\nv_lshlrev_b32 v4, 2, v4\nv_xor_b32 v3, v3, v4")
    e("v_mul_u32_u24 v2, 896, v2\nv_lshl_add_u32 v10, v3, 4, v2")
    for dw in (4, 0):
        e(f"s_sub_u32 s31, s24, {dw}\ns_mul_i32 s42, s31, {32*896}\ns_lshl_b32 s30, s93, 7\ns_add_u32 s42, s42, s30\ns_lshl_b32 s44, s31, 14")
        for i in range(4):
            for j in range(4):
                e(f"s_add_u32 m0, s44, {i*4096 + j*1024}\ns_add_u32 s30, s42, {(8*32*i + 8*j)*896}")
                e("buffer_load_dwordx4 v10, s[4:7], s30 offen lds")
    e(f"s_barrier\ns_waitcnt vmcnt(0)\ns_barrier\ns_branch {name}_C")
    e(f"{name}_cB:")
    phase_b(e, name, st)
    e("s_waitcnt vmcnt(0)")
    st()
    e("s_barrier")
    signal_and_poll(e, name, 'B', 16, False)
    st()
    e(f"{name}_C:")
    phase_t2(e, name, 'ffn2', st)
    st.flush(name, 'c')
    e(f"{name}_end:\ns_endpgm")
    return e.text()
```

```python
import sys
from common import *
from gemm import gen_gemm
from attn import gen_attn
from t2 import gen_t2
from t1b import gen_ffn1
from mlp import gen_mlp
src = open('sequential_preLN__mha_block__dense_activation_gelu__prompt.s.ref').read().split("\n")
hdr = [l for l in src if l.startswith(";") and "offset" in l.split("shape")[0] or l.startswith("; Kernarg")]
K = [(MAIN, 'qkv', 220, 163840), ("attn_kernel", 'attn', 256, 143616), ("mlp_kernel", 'mlp', 224, 136256)]
PROF0 = PROF
nk = int(sys.argv[2]) if len(sys.argv) > 2 else len(K)
out = "\n".join(hdr) + "\n"
for n, k, g, lds in K[:nk]:
    out += f"; @launch kernel={n} grid=({g},1,1) block=(512,1,1) lds={lds}\n"
out += '.amdgcn_target "amdgcn-amd-amdhsa--gfx950"\n.text\n'
for n, k, g, lds in K[:nk]:
    import common
    common.PROF = PROF0 if k == 'mlp' else 0
    out += gen_attn(n) if k == 'attn' else gen_mlp(n) if k == 'mlp' else gen_t2(n, k) if k in ('wo','ffn2') else gen_ffn1(n) if k == 'ffn1' else gen_gemm(n, k)
out += '.section .rodata,"a"\n'
for n, k, g, lds in K[:nk]:
    out += kernel_desc(n)
import os, re
SC = os.environ.get("SC", "")
if SC:
    out = re.sub(r"(buffer_store_dword\w* .* offen[^\n]*)", lambda m: m.group(1) + " " + SC, out)
open(sys.argv[1], "w").write(out)
print(len(out), "bytes")
```

```python
from common import *
import os
PERM = int(os.environ.get('PERM','0'))

Q, O, S, P, KV = 32, 64, 128, 160, 176
MX = 224
RED = 0
XCH = 131072
FLAG = XCH + 4096
QL = XCH + 4096 + 256

def kv(kb): return KV + 16*(kb % 3)

def load_kv(e, kb):
    b = kv(kb)
    e(f"s_add_u32 s30, s42, {kb*2048}")
    e(f"buffer_load_dwordx4 {vr(b,4)}, v1, s[4:7], s30 offen")
    e(f"buffer_load_dwordx4 {vr(b+4,4)}, v1, s[4:7], s30 offen offset:1024")
    e(f"s_add_u32 s30, s30, {2*MB}")
    e(f"buffer_load_dwordx4 {vr(b+8,4)}, v1, s[4:7], s30 offen")
    e(f"buffer_load_dwordx4 {vr(b+12,4)}, v1, s[4:7], s30 offen offset:1024")

def mfma(d, a, b, c):
    return f"v_mfma_f32_32x32x16_bf16 {vr(d,16)}, {vr(a,4)}, {vr(b,4)}, {c}"

def main_pass(e, sub, st=None):
    load_kv(e, 0); load_kv(e, 1)
    for r in range(64): e(f"v_mov_b32 v{O+r}, 0")
    if not sub:
        e(f"s_waitcnt vmcnt(8)\ns_barrier\nv_add_u32 v2, {QL}, v1")
        for k in range(8): e(f"ds_read_b128 {vr(Q+4*k,4)}, v2 offset:{k*1024}")
    def qk(n):
        kb, qb = n >> 2, n & 3; s = S + 16*(n & 1)
        return [mfma(s, kv(kb), Q+8*qb, "0"), mfma(s, kv(kb)+4, Q+8*qb+4, vr(s,16))]
    def pv(n):
        kb, qb = n >> 2, n & 3; p = P + 8*(n & 1); o = O + 16*qb
        return [mfma(o, kv(kb)+8, p, vr(o,16)), mfma(o, kv(kb)+12, p+4, vr(o,16))]
    def valu(n):
        s = S + 16*(n & 1); p = P + 8*(n & 1); qb = n & 3; g = []
        for k in range(4):
            x = []
            if sub: x += [f"v_sub_f32 v{s+4*k+i}, v{s+4*k+i}, v{MX+qb}" for i in range(4)]
            x += [f"v_exp_f32 v{s+4*k+i}, v{s+4*k+i}" for i in range(4)]
            if PERM: x += [f"v_perm_b32 v{p+2*k+i}, v{s+4*k+2*i+1}, v{s+4*k+2*i}, s54" for i in range(2)]
            else: x += [f"v_cvt_pk_bf16_f32 v{p+2*k+i}, v{s+4*k+2*i}, v{s+4*k+2*i+1}" for i in range(2)]
            g.append(x)
        return g
    e("s_waitcnt vmcnt(6) lgkmcnt(0)")
    for x in qk(0): e(x)
    e("s_nop 7\ns_nop 3")
    for n in range(32):
        if n == 1: e("s_waitcnt vmcnt(4)")
        if (n+1) % 4 == 0 and n+1 < 32:
            e(f"s_waitcnt vmcnt({4 if (n+1)//4 < 7 else 0})")
        m = (qk(n+1) if n+1 < 32 else [None, None]) + (pv(n-1) if n else [None, None])
        g = valu(n)
        for k in range(4):
            if m[k]: e(m[k])
            for x in g[k]: e(x)
        if n % 4 == 1 and n//4 + 2 < 8:
            load_kv(e, n//4 + 2)
        if n == 27 and not sub:
            e("buffer_load_dwordx4 v[228:231], v1, s[12:15], s55 offen")
    e("s_nop 1")
    for x in pv(31): e(x)

def reduce_store(e, name):
    e("s_lshl_b32 s29, s24, 14\nv_add_u32 v2, s29, v1\ns_nop 7")
    for qb in range(4):
        for q in range(4):
            e(f"ds_write_b128 v2, {vr(O+16*qb+4*q,4)} offset:{qb*4096+q*1024}")
    e("s_waitcnt lgkmcnt(0)\ns_barrier")
    e("s_lshr_b32 s48, s24, 1\ns_and_b32 s49, s24, 1")
    e("s_lshl_b32 s29, s48, 12\ns_lshl_b32 s30, s49, 11\ns_add_u32 s30, s30, s29\nv_add_u32 v2, s30, v1")
    e("v_add_u32 v3, 0x10000, v2")
    e("v_and_b32 v4, 31, v0\nv_lshlrev_b32 v4, 4, v4\ns_add_u32 s29, s29, 3584\nv_add_u32 v4, s29, v4\nv_add_u32 v5, 0x10000, v4")
    for w in range(8):
        for q in range(2):
            e(f"ds_read_b128 {vr(O+8*w+4*q,4)}, v{2+(w>>2)} offset:{(w&3)*16384+q*1024}")
        e(f"ds_read_b32 v{S+w}, v{4+(w>>2)} offset:{(w&3)*16384}")
        if w == 3: e("s_waitcnt lgkmcnt(6)")
    e("s_waitcnt lgkmcnt(0)")
    for st in (4, 2, 1):
        for w in range(st):
            for r in range(0, 8, 2):
                e(f"v_pk_add_f32 {vr(O+8*w+r,2)}, {vr(O+8*w+r,2)}, {vr(O+8*(w+st)+r,2)}")
            e(f"v_add_f32 v{S+w}, v{S+w}, v{S+w+st}")
    e(f"v_rcp_f32 v{S+1}, v{S}")
    e(f"v_cmp_le_f32 vcc, 0x21800000, v{S}\nv_cmp_ge_f32 s[50:51], s44, v{S}")
    for r in range(8):
        e(f"v_mul_f32 v{O+r}, v{O+r}, v{S+1}")
    e("s_and_b64 s[50:51], s[50:51], vcc")
    e("s_cmp_eq_u32 s49, 1\ns_cselect_b64 s[52:53], s[46:47], 0")
    for r in range(4, 8):
        e(f"v_cndmask_b32 v{O+r}, v{O+r}, 0, s[52:53]")
    for i in range(4):
        e(f"v_cvt_pk_bf16_f32 v{P+i}, v{O+2*i}, v{O+2*i+1}")
    e("s_lshl_b32 s29, s26, 2\ns_add_u32 s29, s29, s48\ns_lshl_b32 s29, s29, 5")
    e("s_lshl_b32 s30, s25, 1\ns_add_u32 s29, s29, s30\ns_add_u32 s29, s29, s49\ns_lshl_b32 s29, s29, 10")
    e(f"buffer_store_dwordx4 {vr(P,4)}, v1, s[8:11], s29 offen sc1")

def gen_attn(name):
    e = Em()
    kernel_head(e, name)
    st = Stamp(e, 12); st.n = 99
    e(f"s_cmp_ge_u32 s2, 256\ns_cbranch_scc1 {name}_end")
    load_ptr(e, 34, 'ws'); load_ptr(e, 36, 'w2'); load_ptr(e, 38, 'wo')
    e("v_lshrrev_b32 v1, 6, v0\nv_and_b32 v0, 63, v0\ns_nop 0\nv_readfirstlane_b32 s24, v1")
    e("s_and_b32 s27, s2, 7\ns_lshr_b32 s28, s2, 3\ns_and_b32 s25, s28, 1\ns_lshl_b32 s27, s27, 1")
    e("s_add_u32 s25, s25, s27\ns_lshr_b32 s26, s28, 1")
    e("s_mov_b32 s46, 0\ns_mov_b32 s47, -1\ns_mov_b32 s44, 0x5d800000\ns_mov_b32 s45, 0\ns_mov_b32 s54, 0x07060302")
    e("v_lshlrev_b32 v1, 4, v0")
    e("s_waitcnt lgkmcnt(0)")
    srd(e, 4, 34, 6*MB, WS_Q); srd(e, 8, 34, 2*MB, WS_O)
    e("s_lshl_b32 s55, s2, 3\ns_add_u32 s55, s55, s24\ns_cmp_lt_u32 s55, 1568")
    e("s_cselect_b32 s12, s36, s38\ns_cselect_b32 s13, s37, s39\ns_mov_b32 s29, 401408\ns_cselect_b32 s14, 1605632, s29\ns_mov_b32 s15, 0x00020000")
    e("s_cselect_b32 s29, 0, 1568\ns_sub_u32 s55, s55, s29\ns_lshl_b32 s55, s55, 10")
    e("s_lshl_b32 s29, s25, 6\ns_lshl_b32 s30, s26, 2\ns_add_u32 s30, s30, s29\ns_lshl_b32 s43, s30, 11")
    e(f"s_lshl_b32 s30, s24, 3\ns_add_u32 s30, s30, s29\ns_lshl_b32 s42, s30, 11\ns_add_u32 s42, s42, {WS_K}")
    e(f"s_lshl_b32 s29, s24, 10\ns_add_u32 m0, s29, {QL}\ns_add_u32 s30, s43, s29")
    e("buffer_load_dwordx4 v1, s[4:7], s30 offen lds")
    e(f"v_mov_b32 v2, {FLAG}\nv_mov_b32 v3, 0\nds_write_b32 v2, v3")
    main_pass(e, False, st)
    e(f"{name}_reduce:")
    reduce_store(e, name)
    e(f"s_cmp_eq_u32 s45, 1\ns_cbranch_scc1 {name}_adone")
    e(f"v_mov_b32 v2, {FLAG}\nv_mov_b32 v3, 1")
    e(f"s_cmp_eq_u64 s[50:51], -1\ns_cbranch_scc1 {name}_ok\nds_write_b32 v2, v3\n{name}_ok:")
    e("s_waitcnt lgkmcnt(0)\ns_barrier\nds_read_b32 v3, v2\ns_waitcnt lgkmcnt(0)\ns_nop 0")
    e(f"v_readfirstlane_b32 s29, v3\ns_nop 3\ns_cmp_eq_u32 s29, 0\ns_cbranch_scc1 {name}_adone")
    e("s_mov_b32 s45, 1\ns_waitcnt vmcnt(0)")
    for qb in range(4): e(f"v_mov_b32 v{MX+qb}, 0xff800000")
    e("s_mov_b32 s48, 0")
    e(f"{name}_mx:")
    e("s_lshl_b32 s30, s48, 11\ns_add_u32 s30, s30, s42")
    e(f"buffer_load_dwordx4 {vr(KV,4)}, v1, s[4:7], s30 offen")
    e(f"buffer_load_dwordx4 {vr(KV+4,4)}, v1, s[4:7], s30 offen offset:1024")
    e("s_waitcnt vmcnt(0)")
    for qb in range(4):
        e(mfma(S, KV, Q+8*qb, "0")); e(mfma(S, KV+4, Q+8*qb+4, vr(S,16)))
        e("s_nop 7\ns_nop 7")
        for r in range(0, 16, 2):
            e(f"v_max3_f32 v{MX+qb}, v{MX+qb}, v{S+r}, v{S+r+1}")
        e("s_nop 7")
    e(f"s_add_u32 s48, s48, 1\ns_cmp_lt_u32 s48, 8\ns_cbranch_scc1 {name}_mx")
    e(f"s_lshl_b32 s29, s24, 9\ns_add_u32 s29, s29, {XCH}\nv_and_b32 v4, 31, v0\nv_lshlrev_b32 v4, 2, v4\nv_add_u32 v2, s29, v4")
    for qb in range(4):
        swap_add(e, MX+qb, 3, "v_max_f32")
        e(f"ds_write_b32 v2, v{MX+qb} offset:{qb*128}")
    e(f"s_waitcnt lgkmcnt(0)\ns_barrier\nv_add_u32 v2, {XCH}, v4")
    for qb in range(4):
        for w in range(8):
            e(f"ds_read_b32 v{S+w}, v2 offset:{w*512+qb*128}")
        e("s_waitcnt lgkmcnt(0)")
        e(f"v_max3_f32 v{MX+qb}, v{S}, v{S+1}, v{S+2}\nv_max3_f32 v{MX+qb}, v{MX+qb}, v{S+3}, v{S+4}")
        e(f"v_max3_f32 v{MX+qb}, v{MX+qb}, v{S+5}, v{S+6}\nv_max_f32 v{MX+qb}, v{MX+qb}, v{S+7}")
    main_pass(e, True)
    e(f"s_branch {name}_reduce")
    e(f"{name}_adone:")
    e("s_waitcnt vmcnt(0)\ns_barrier")
    e(f"s_cmp_lg_u32 s24, 0\ns_cbranch_scc1 {name}_asig")
    e(f"s_lshl_b32 s29, s26, 7\ns_add_u32 s29, s29, {WS_CNT + 128*32}\nv_mov_b32 v2, s29\nv_mov_b32 v3, 1")
    e("s_mov_b64 exec, 1\nglobal_atomic_add v2, v3, s[34:35]\ns_mov_b64 exec, -1")
    e(f"{name}_asig:")
    from mlp import mlp_body
    mlp_body(e, name)
    return e.text()
```

```python
from common import *
from t2 import ACC, BR, AF_, AUX, T, WS_STAT, LST
import t1b
from t1b import A_, B_, ST_, WS_CS
CSL = 135168

def wait_count(e, name, word, n):
    e(f"s_waitcnt lgkmcnt(0)\ns_barrier\ns_mov_b32 s31, 0\ns_cmp_lg_u32 s24, 0\ns_cbranch_scc1 {name}_oQ")
    e(f"s_lshl_b32 s29, s90, 7\ns_add_u32 s29, s29, {WS_CNT + 128*word}\nv_mov_b32 v2, s29\nv_mov_b32 v3, 1\ns_mov_b64 exec, 1")
    e(f"{name}_pQ:\nglobal_load_dword v4, v2, s[34:35] sc1\ns_add_u32 s31, s31, 1\ns_waitcnt vmcnt(0)")
    e(f"v_readfirstlane_b32 s30, v4\ns_nop 1\ns_cmp_ge_u32 s31, 0x100000\ns_cbranch_scc1 {name}_qQ")
    e(f"s_cmp_ge_u32 s30, {n}\ns_cbranch_scc1 {name}_qQ\ns_sleep 3\ns_branch {name}_pQ")
    e(f"{name}_qQ:\ns_mov_b64 exec, -1\nv_mov_b32 v2, {CSL + 1024}\nds_write_b32 v2, v3 offset:4\ns_waitcnt lgkmcnt(0)\ns_branch {name}_wQ")
    e(f"{name}_oQ:\nv_mov_b32 v2, {CSL + 1024}")
    e(f"{name}_lQ:\nds_read_b32 v4, v2 offset:4\ns_add_u32 s31, s31, 1\ns_waitcnt lgkmcnt(0)")
    e(f"v_readfirstlane_b32 s30, v4\ns_nop 1\ns_cmp_ge_u32 s31, 0x1000000\ns_cbranch_scc1 {name}_wQ")
    e(f"s_cmp_eq_u32 s30, 1\ns_cbranch_scc1 {name}_wQ\ns_sleep 1\ns_branch {name}_lQ")
    e(f"{name}_wQ:")

def phase_t2(e, name, kind, st=None):
    wo = kind == 'wo'
    nb, ns, wr = (2, 32, 28) if wo else (7, 112, 32)
    e("v_lshrrev_b32 v2, 3, v0\nv_and_b32 v3, 7, v0\nv_bfe_u32 v4, v0, 4, 1\nv_lshlrev_b32 v4, 2, v4\nv_xor_b32 v3, v3, v4")
    e("v_mul_u32_u24 v2, 896, v2\nv_lshl_add_u32 v10, v3, 4, v2\nv_lshlrev_b32 v11, 4, v0")
    e(f"s_mul_i32 s42, s24, {wr*896}\ns_lshl_b32 s30, s26, 7\ns_add_u32 s42, s42, s30")
    e(f"s_mul_i32 s43, s25, {2*ns*1024}\ns_lshl_b32 s30, s24, 11\ns_add_u32 s43, s43, s30\ns_lshl_b32 s44, s24, 14")
    srd(e, 4, 32 if wo else 84, 448*896 if wo else 1792*896)
    srd(e, 8, 34, 64*ns*1024, WS_O if wo else WS_G)
    ops = []
    def issue(i, dma=True, act=True):
        for j in range(4 if dma else 0):
            ops.append(i)
            e(f"s_add_u32 m0, s44, {(i%4)*4096 + j*1024}\ns_add_u32 s30, s42, {(8*wr*i + 8*j)*896}")
            e("buffer_load_dwordx4 v10, s[4:7], s30 offen lds")
        for sp in range(2 if act else 0):
            for tb in range(2):
                ops.append(i)
                e(f"s_add_u32 s30, s43, {(tb*ns + 16*i + sp)*1024}")
                e(f"buffer_load_dwordx4 {vr(BR+16*(i%4)+8*sp+4*tb,4)}, v11, s[8:11], s30 offen sc1")
    issued = min(nb, 4)
    for i in range(issued): issue(i, wo, not wo)
    e("v_lshrrev_b32 v12, 5, v0\nv_and_b32 v15, 31, v0")
    e("s_lshr_b32 s48, s24, 2\ns_bfe_u32 s50, s24, 0x10001\ns_and_b32 s53, s24, 1")
    e("s_lshl_b32 s29, s25, 1\ns_add_u32 s51, s29, s50\ns_lshl_b32 s29, s26, 1\ns_add_u32 s49, s29, s48")
    e("s_lshl_b32 s29, s51, 5\nv_add_u32 v16, s29, v15\nv_mul_u32_u24 v16, 896, v16\nv_lshl_add_u32 v16, v12, 3, v16")
    e("s_lshl_b32 s52, s49, 6\ns_lshl_b32 s29, s53, 5\ns_add_u32 s52, s52, s29")
    e("s_mul_i32 s29, s51, 28\ns_lshl_b32 s30, s49, 1\ns_add_u32 s29, s29, s30\ns_add_u32 s29, s29, s53\ns_lshl_b32 s55, s29, 10")
    if wo:
        srd(e, 12, 34, 64*28*1024, WS_H); srd(e, 20, 36, 2048*896); srd(e, 16, 34, 7*2048*8, WS_STAT)
        for q in range(2):
            e(f"buffer_load_dwordx2 {vr(AUX+2*q,2)}, v16, s[20:23], s52 offen offset:{16*q}")
        ops.extend([-1]*2)
        wait_count(e, name, 32, 16)
        e("v_lshlrev_b32 v11, 4, v0")
        for i in range(issued): issue(i, False)
    else:
        srd(e, 12, 40, 2048*896); srd(e, 16, 38, 896)
        e("v_lshlrev_b32 v17, 3, v12")
        for q in range(2):
            e(f"buffer_load_dwordx2 {vr(AUX+4+2*q,2)}, v17, s[16:19], s52 offen offset:{16*q}")
        ops.extend([-1]*2)
    e("v_bfe_u32 v13, v0, 2, 2\nv_and_b32 v14, 3, v0\nv_bfe_u32 v18, v0, 4, 1")
    e("v_lshl_add_u32 v19, v12, 2, v13\nv_lshlrev_b32 v19, 7, v19\nv_add_u32 v19, s44, v19")
    e("v_and_b32 v20, 1, v14\nv_lshl_add_u32 v19, v20, 3, v19\nv_lshrrev_b32 v20, 1, v14\nv_lshl_add_u32 v20, v18, 1, v20")
    e("v_lshrrev_b32 v21, 1, v13\nv_lshlrev_b32 v21, 2, v21")
    e("v_xor_b32 v22, v20, v21\nv_lshl_add_u32 v2, v22, 4, v19\nv_add_u32 v20, 4, v20\nv_xor_b32 v22, v20, v21\nv_lshl_add_u32 v4, v22, 4, v19")
    for i in range(nb):
        later = len(ops) - 1 - max(k for k, b in enumerate(ops) if b == i)
        e(f"s_waitcnt vmcnt({later})")
        for sp in range(2):
            for fb in range(2):
                o = (i % 4)*4096 + sp*2048
                e(f"ds_read_b64_tr_b16 {vr(AF_+8*sp+4*fb,2)}, v{2+2*fb} offset:{o}")
                e(f"ds_read_b64_tr_b16 {vr(AF_+8*sp+4*fb+2,2)}, v{2+2*fb} offset:{o+1024}")
        for sp in range(2):
            e(f"s_waitcnt lgkmcnt({4 if sp == 0 else 0})")
            for fb in range(2):
                for tb in range(2):
                    d = vr(ACC+16*(2*fb+tb), 16)
                    e(f"v_mfma_f32_32x32x16_bf16 {d}, {vr(AF_+8*sp+4*fb,4)}, {vr(BR+16*(i%4)+8*sp+4*tb,4)}, {'0' if i == 0 and sp == 0 else d}")
        if issued < nb:
            issue(issued); issued += 1
    if st: st()
    e("v_add_u32 v17, s44, v11\ns_nop 7")
    for b in range(4):
        for q in range(4):
            e(f"ds_write_b128 v17, {vr(ACC+16*b+4*q,4)} offset:{b*4096+q*1024}")
    e("s_waitcnt lgkmcnt(0)\ns_barrier")
    e("s_lshl_b32 s29, s24, 11\nv_add_u32 v17, s29, v11\nv_add_u32 v18, 0x10000, v17")
    for w in range(8):
        for q in range(2):
            e(f"ds_read_b128 {vr(ACC+8*w+4*q,4)}, v{17+(w>>2)} offset:{(w&3)*16384+q*1024}")
    e("s_waitcnt vmcnt(0)")
    if wo:
        unpack_bf16(e, T, AUX, 4)
    else:
        unpack_bf16(e, T, 26, 4); unpack_bf16(e, T+8, AUX+4, 4)
        for r in range(0, 8, 2): e(f"v_pk_add_f32 {vr(T+r,2)}, {vr(T+r,2)}, {vr(T+8+r,2)}")
    e("s_waitcnt lgkmcnt(0)")
    for s_ in (4, 2, 1):
        for w in range(s_):
            for r in range(0, 8, 2):
                e(f"v_pk_add_f32 {vr(ACC+8*w+r,2)}, {vr(ACC+8*w+r,2)}, {vr(ACC+8*(w+s_)+r,2)}")
    for r in range(0, 8, 2): e(f"v_pk_add_f32 {vr(ACC+r,2)}, {vr(ACC+r,2)}, {vr(T+r,2)}")
    for i in range(4): e(f"v_cvt_pk_bf16_f32 v{T+16+i}, v{ACC+2*i}, v{ACC+2*i+1}")
    if wo:
        e(f"buffer_store_dwordx4 {vr(T+16,4)}, v11, s[12:15], s55 offen sc1")
        for k in range(4): e(f"v_mov_b32 v{26+k}, v{T+16+k}")
        unpack_bf16(e, ACC, T+16, 4)
        e(f"v_add_f32 v{T}, v{ACC}, v{ACC+1}\nv_mul_f32 v{T+1}, v{ACC}, v{ACC}\nv_fmac_f32 v{T+1}, v{ACC+1}, v{ACC+1}")
        for r in range(2, 8):
            e(f"v_add_f32 v{T}, v{T}, v{ACC+r}\nv_fmac_f32 v{T+1}, v{ACC+r}, v{ACC+r}")
        e(f"s_lshl_b32 s29, s24, 9\ns_add_u32 s29, s29, {LST}\nv_lshlrev_b32 v3, 3, v0\nv_add_u32 v3, s29, v3")
        e(f"ds_write_b64 v3, {vr(T,2)}\ns_waitcnt lgkmcnt(0)\ns_barrier")
        e(f"s_cmp_ge_u32 s24, 4\ns_cbranch_scc1 {name}_ldA\ns_cmp_lg_u32 s24, 0\ns_cbranch_scc1 {name}_done")
        e(f"v_lshlrev_b32 v3, 3, v15\nv_lshl_add_u32 v3, v12, 10, v3\nv_add_u32 v3, {LST}, v3")
        for k, o in enumerate((0, 256, 512, 768, 2048, 2304, 2560, 2816)):
            e(f"ds_read_b64 {vr(ACC+2*k,2)}, v3 offset:{o}")
        e("s_waitcnt lgkmcnt(0)")
        for k in range(1, 8): e(f"v_pk_add_f32 {vr(ACC,2)}, {vr(ACC,2)}, {vr(ACC+2*k,2)}")
        e(f"v_mov_b32 v4, v{ACC}\nv_mov_b32 v5, v{ACC+1}")
        e("s_lshl_b32 s29, s26, 11\ns_lshl_b32 s30, s25, 6\ns_add_u32 s29, s29, s30\ns_lshl_b32 s29, s29, 3\nv_lshlrev_b32 v3, 3, v0")
        e("buffer_store_dwordx2 v[4:5], v3, s[16:19], s29 offen sc1")
        e(f"{name}_done:")
    else:
        for q in range(2):
            e(f"buffer_store_dwordx2 {vr(T+16+2*q,2)}, v16, s[12:15], s52 offen offset:{16*q}")

def phase_b(e, name, st):
    e("v_lshlrev_b32 v24, 4, v0\nv_and_b32 v15, 31, v0\nv_lshrrev_b32 v12, 5, v0")
    e("s_lshl_b32 s51, s90, 2\ns_add_u32 s51, s51, s24\ns_mul_i32 s43, s51, 28672\ns_lshl_b32 s42, s51, 8\nv_lshlrev_b32 v16, 3, v15")
    srd(e, 8, 34, 64*28*1024, WS_H); srd(e, 16, 34, 7*2048*8, WS_STAT); srd(e, 12, 34, 64*112*1024, WS_G)
    for n in range(28):
        if n % 4 == 0: e(f"s_add_u32 s30, s43, {n*1024}")
        e(f"buffer_load_dwordx4 {vr(B_+4*n,4)}, v24, s[8:11], s30 offen offset:{(n%4)*1024} sc1")
        if n == 3:
            for c in range(7):
                e(f"s_add_u32 s31, s42, {c*16384}\nbuffer_load_dwordx2 {vr(ST_+2*c,2)}, v16, s[16:19], s31 offen sc1")
    e("v_bfe_u32 v11, v0, 4, 1\nv_bfe_u32 v13, v0, 2, 2\nv_and_b32 v14, 3, v0")
    e("v_lshl_add_u32 v17, v12, 2, v13\nv_lshlrev_b32 v17, 8, v17\nv_and_b32 v18, 1, v14\nv_lshl_add_u32 v17, v18, 3, v17")
    e("v_lshrrev_b32 v18, 1, v14\nv_lshl_add_u32 v18, v11, 1, v18\nv_lshlrev_b32 v19, 2, v13")
    for fb in range(4):
        e(f"v_add_u32 v20, {4*fb}, v18\nv_xor_b32 v20, v20, v19\nv_lshl_add_u32 v{2+2*fb}, v20, 4, v17\nv_add_u32 v{3+2*fb}, 0x10000, v{2+2*fb}")
    def reads(n):
        ch, s = n >> 2, n & 3; o = ch*16384 + s*4096; hi = o >> 16; o &= 65535; p = A_ + 16*(n & 1); r = []
        for fb in range(4):
            r.append(f"ds_read_b64_tr_b16 {vr(p+4*fb,2)}, v{2+2*fb+hi} offset:{o}")
            r.append(f"ds_read_b64_tr_b16 {vr(p+4*fb+2,2)}, v{2+2*fb+hi} offset:{o+2048}")
        return r
    e("s_barrier")
    for x in reads(0): e(x)
    for n in range(28):
        p = A_ + 16*(n & 1)
        e(f"s_waitcnt vmcnt({min(27-n, 24) if n < 4 else 27-n}) lgkmcnt(0)")
        nxt = reads(n+1) if n < 27 else []
        if nxt and (n+1) % 4 == 0: e("s_barrier")
        for fb in range(4):
            d = vr(ACC+16*fb, 16)
            e(f"v_mfma_f32_32x32x16_bf16 {d}, {vr(p+4*fb,4)}, {vr(B_+4*n,4)}, {'0' if n == 0 else d}")
            if fb < 3:
                for x in nxt[3*fb:3*fb+3 if fb < 2 else 8]: e(x)
    st()
    e("s_barrier")
    for c in range(1, 7): e(f"v_pk_add_f32 {vr(ST_,2)}, {vr(ST_,2)}, {vr(ST_+2*c,2)}")
    R, M = ST_, ST_+1
    e(f"s_mov_b32 s29, 0x3b124925\nv_mul_f32 v{M}, s29, v{M}\nv_mul_f32 v{ST_+2}, s29, v{R}")
    e(f"v_fma_f32 v{R}, -v{ST_+2}, v{ST_+2}, v{M}\nv_max_f32 v{R}, 0, v{R}\nv_add_f32 v{R}, 0x3727c5ac, v{R}\nv_rsq_f32 v{R}, v{R}\ns_nop 0")
    e(f"v_mul_f32 v{M}, v{ST_+2}, v{R}")
    e("s_mov_b32 s56, 0xc0135761\ns_mov_b32 s57, 0xbdd2d3e8")
    e(f"v_lshlrev_b32 v18, 4, v12\nv_add_u32 v18, {CSL}, v18")
    CS, BI, U, W, PK = B_, B_+16, B_+32, B_+48, B_+64
    rm = vr(ST_, 2)
    for fb in range(4):
        a = ACC + 16*fb
        for q in range(4):
            e(f"ds_read_b128 {vr(CS+4*q,4)}, v18 offset:{fb*128+32*q}\nds_read_b128 {vr(BI+4*q,4)}, v18 offset:{512+fb*128+32*q}")
        e("s_waitcnt lgkmcnt(0)")
        P = lambda b, r: vr(b+r, 2)
        rs = range(0, 16, 2)
        for r in rs: e(f"v_pk_fma_f32 {P(BI,r)}, {P(CS,r)}, {rm}, {P(BI,r)} op_sel:[0,1,0] op_sel_hi:[1,1,1] neg_lo:[1,0,0] neg_hi:[1,0,0]")
        for r in rs: e(f"v_pk_fma_f32 {P(a,r)}, {P(a,r)}, {rm}, {P(BI,r)} op_sel_hi:[1,0,1]")
        for r in rs: e(f"v_pk_mul_f32 {P(U,r)}, {P(a,r)}, {P(a,r)}")
        for r in rs: e(f"v_pk_fma_f32 {P(U,r)}, {P(U,r)}, s[56:57], s[56:57] op_sel:[0,1,0] op_sel_hi:[1,1,0]")
        for r in rs: e(f"v_pk_mul_f32 {P(U,r)}, {P(U,r)}, {P(a,r)}")
        for r in range(16): e(f"v_exp_f32 v{W+r}, v{U+r}")
        for r in rs: e(f"v_pk_add_f32 {P(W,r)}, {P(W,r)}, 1.0 op_sel_hi:[1,0]")
        for r in range(16): e(f"v_rcp_f32 v{W+r}, v{W+r}")
        for r in rs: e(f"v_pk_mul_f32 {P(a,r)}, {P(a,r)}, {P(W,r)}")
        k = PK + 8*(fb & 1)
        for i in range(8): e(f"v_cvt_pk_bf16_f32 v{k+i}, v{a+2*i}, v{a+2*i+1}")
        e(f"s_mul_i32 s29, s51, 112\ns_lshl_b32 s30, s91, 3\ns_add_u32 s29, s29, s30\ns_add_u32 s29, s29, {2*fb}\ns_lshl_b32 s55, s29, 10")
        e(f"buffer_store_dwordx4 {vr(k,4)}, v24, s[12:15], s55 offen sc1\nbuffer_store_dwordx4 {vr(k+4,4)}, v24, s[12:15], s55 offen offset:1024 sc1")

FLG = CSL + 1024

def signal_and_poll(e, name, tag, word, lds_flag):
    e(f"s_mov_b32 s31, 0\ns_cmp_lg_u32 s24, 0\ns_cbranch_scc1 {name}_o{tag}")
    e(f"s_lshl_b32 s29, s90, 7\ns_add_u32 s29, s29, {WS_CNT + 128*word}\nv_mov_b32 v2, s29\nv_mov_b32 v3, 1")
    e("s_mov_b64 exec, 1\nglobal_atomic_add v2, v3, s[34:35]")
    e(f"{name}_p{tag}:\nglobal_load_dword v4, v2, s[34:35] sc1\ns_add_u32 s31, s31, 1\ns_waitcnt vmcnt(0)")
    e(f"v_readfirstlane_b32 s30, v4\ns_nop 1\ns_cmp_ge_u32 s31, 0x100000\ns_cbranch_scc1 {name}_q{tag}")
    e(f"s_cmp_ge_u32 s30, 14\ns_cbranch_scc1 {name}_q{tag}\ns_sleep 3\ns_branch {name}_p{tag}")
    e(f"{name}_q{tag}:\ns_mov_b64 exec, -1")
    if lds_flag:
        e(f"v_mov_b32 v2, {FLG}\nds_write_b32 v2, v3\ns_waitcnt lgkmcnt(0)\ns_branch {name}_w{tag}")
        e(f"{name}_o{tag}:\nv_mov_b32 v2, {FLG}")
        e(f"{name}_l{tag}:\nds_read_b32 v4, v2\ns_add_u32 s31, s31, 1\ns_waitcnt lgkmcnt(0)")
        e(f"v_readfirstlane_b32 s30, v4\ns_nop 1\ns_cmp_ge_u32 s31, 0x1000000\ns_cbranch_scc1 {name}_w{tag}")
        e(f"s_cmp_eq_u32 s30, 1\ns_cbranch_scc1 {name}_w{tag}\ns_sleep 1\ns_branch {name}_l{tag}")
        e(f"{name}_w{tag}:")
    else:
        e(f"{name}_o{tag}:\ns_barrier")

def mlp_body(e, name):
    st = Stamp(e, 40); st()
    e(f"s_cmp_ge_u32 s2, 224\ns_cbranch_scc1 {name}_end")
    for r, a in ((32,'wo'),(36,'x'),(38,'b2'),(40,'out'),(58,'w1'),(84,'w2')): load_ptr(e, r, a)
    e("s_and_b32 s27, s2, 7\ns_lshr_b32 s28, s2, 3")
    e("s_and_b32 s29, s28, 1\ns_lshl_b32 s90, s27, 1\ns_add_u32 s90, s90, s29\ns_lshr_b32 s91, s28, 1")
    e("s_and_b32 s29, s91, 1\ns_lshl_b32 s92, s90, 1\ns_add_u32 s92, s92, s29\ns_lshr_b32 s93, s91, 1")
    e("s_mov_b32 s25, s92\ns_mov_b32 s26, s93\ns_waitcnt lgkmcnt(0)")
    e(f"v_mov_b32 v2, {FLG}\nv_mov_b32 v3, 0\nds_write_b32 v2, v3\nds_write_b32 v2, v3 offset:4")
    phase_t2(e, name, 'wo')
    e("s_waitcnt vmcnt(0)")
    st()
    e("s_barrier")
    signal_and_poll(e, name, 'A', 0, True)
    st()
    e(f"s_branch {name}_cB")
    e(f"{name}_ldA:")
    e("s_sub_u32 s30, s24, 4\ns_lshl_b32 s44, s30, 12")
    e("v_lshrrev_b32 v2, 4, v0\nv_and_b32 v3, 15, v0\nv_lshlrev_b32 v4, 2, v2\nv_xor_b32 v3, v3, v4")
    e("v_mul_u32_u24 v2, 3584, v2\nv_lshl_add_u32 v10, v3, 4, v2\nv_lshlrev_b32 v11, 2, v0")
    e(f"s_mul_i32 s42, s30, {16*3584}\ns_lshl_b32 s31, s91, 8\ns_add_u32 s42, s42, s31")
    e("s_and_b32 s31, s30, 1\ns_lshl_b32 s31, s31, 8\ns_lshr_b32 s29, s30, 1\ns_mul_i32 s43, s29, 7168\ns_add_u32 s43, s43, s31")
    e(f"s_lshl_b32 s31, s91, 9\ns_add_u32 s43, s43, s31\ns_lshl_b32 s45, s30, 8\ns_add_u32 s45, s45, {CSL}")
    srd(e, 4, 58, 448*3584); srd(e, 8, 34, 2*7168, WS_CS)
    e("s_waitcnt vmcnt(0)\ns_barrier")
    e("s_mov_b32 m0, s45\ns_nop 0\nbuffer_load_dword v11, s[8:11], s43 offen lds")
    def issue(ch):
        for i in range(4):
            e(f"s_add_u32 m0, s44, {ch*16384 + i*1024}\ns_add_u32 s30, s42, {(64*ch + 4*i)*3584}")
            e("buffer_load_dwordx4 v10, s[4:7], s30 offen lds")
    issued = 3
    for ch in range(issued): issue(ch)
    for ch in range(7):
        e(f"s_waitcnt vmcnt({4*(issued-ch-1)})\ns_barrier")
        while issued < min(7, ch + 5): issue(issued); issued += 1
    e("s_barrier")
    srd(e, 4, 84, 1792*896)
    e("v_lshrrev_b32 v2, 3, v0\nv_and_b32 v3, 7, v0\nv_bfe_u32 v4, v0, 4, 1\nv_lshlrev_b32 v4, 2, v4\nv_xor_b32 v3, v3, v4")
    e("v_mul_u32_u24 v2, 896, v2\nv_lshl_add_u32 v10, v3, 4, v2")
    for dw in (4, 0):
        e(f"s_sub_u32 s31, s24, {dw}\ns_mul_i32 s42, s31, {32*896}\ns_lshl_b32 s30, s93, 7\ns_add_u32 s42, s42, s30\ns_lshl_b32 s44, s31, 14")
        for i in range(4):
            for j in range(4):
                e(f"s_add_u32 m0, s44, {i*4096 + j*1024}\ns_add_u32 s30, s42, {(8*32*i + 8*j)*896}")
                e("buffer_load_dwordx4 v10, s[4:7], s30 offen lds")
    e(f"s_barrier\ns_waitcnt vmcnt(0)\ns_barrier\ns_branch {name}_C")
    e(f"{name}_cB:")
    phase_b(e, name, st)
    e("s_waitcnt vmcnt(0)")
    st()
    e("s_barrier")
    signal_and_poll(e, name, 'B', 16, False)
    st()
    e(f"{name}_C:")
    phase_t2(e, name, 'ffn2', st)
    st.flush(name, 'c')
    e(f"{name}_end:\ns_endpgm")
```

```python
from common import *

A_, ACC, B_, ST_ = 32, 64, 128, 240
WS_STAT = 17*MB
WS_CS = 18*MB
CSL = 114688

def gen_ffn1(name):
    e = Em(); kernel_head(e, name)
    s0 = Stamp(e, 36); s0()
    e(f"s_cmp_ge_u32 s2, 224\ns_cbranch_scc1 {name}_end")
    load_ptr(e, 32, 'w1'); load_ptr(e, 34, 'ws')
    e("v_lshrrev_b32 v1, 6, v0\nv_and_b32 v0, 63, v0\ns_and_b32 s27, s2, 7\nv_readfirstlane_b32 s24, v1\ns_lshr_b32 s28, s2, 3")
    e("s_and_b32 s25, s27, 3\ns_lshl_b32 s25, s25, 2\ns_and_b32 s29, s28, 3\ns_add_u32 s25, s25, s29")
    e("s_lshr_b32 s26, s27, 2\ns_mul_i32 s26, s26, 7\ns_lshr_b32 s29, s28, 2\ns_add_u32 s26, s26, s29")
    e(f"s_cmp_lt_u32 s24, 4\ns_cbranch_scc1 {name}_compute")
    sl = Stamp(e, 42); sl.n = 1
    e("s_sub_u32 s24, s24, 4\ns_lshl_b32 s44, s24, 12")
    e("v_lshrrev_b32 v2, 4, v0\nv_and_b32 v3, 15, v0\nv_lshlrev_b32 v4, 2, v2\nv_xor_b32 v3, v3, v4")
    e("v_mul_u32_u24 v2, 3584, v2\nv_lshl_add_u32 v10, v3, 4, v2\nv_lshlrev_b32 v11, 2, v0")
    e(f"s_mul_i32 s42, s24, {16*3584}\ns_lshl_b32 s30, s26, 8\ns_add_u32 s42, s42, s30")
    e("s_and_b32 s30, s24, 1\ns_lshl_b32 s30, s30, 8\ns_lshr_b32 s31, s24, 1\ns_mul_i32 s43, s31, 7168\ns_add_u32 s43, s43, s30")
    e(f"s_lshl_b32 s30, s26, 9\ns_add_u32 s43, s43, s30\ns_lshl_b32 s45, s24, 8\ns_add_u32 s45, s45, {CSL}")
    e("s_waitcnt lgkmcnt(0)")
    srd(e, 4, 32, 448*3584); srd(e, 8, 34, 2*7168, WS_CS)
    e("s_mov_b32 m0, s45\ns_nop 0\nbuffer_load_dword v11, s[8:11], s43 offen lds")
    def issue(ch):
        for i in range(4):
            e(f"s_add_u32 m0, s44, {ch*16384 + i*1024}\ns_add_u32 s30, s42, {(64*ch + 4*i)*3584}")
            e("buffer_load_dwordx4 v10, s[4:7], s30 offen lds")
    issued = 2
    issue(0); issue(1)
    for ch in range(7):
        e(f"s_waitcnt vmcnt({4*(issued-ch-1)})")
        if ch in (0, 1, 6): sl()
        e("s_barrier")
        while issued < min(7, ch + 5):
            issue(issued); issued += 1
    sl.flush(name, 'l')
    e("s_endpgm")
    e(f"{name}_compute:")
    st = Stamp(e, 36); st.n = 1
    e("v_lshlrev_b32 v24, 4, v0\nv_and_b32 v15, 31, v0\nv_lshrrev_b32 v12, 5, v0")
    e("s_lshl_b32 s51, s25, 2\ns_add_u32 s51, s51, s24\ns_mul_i32 s43, s51, 28672\ns_lshl_b32 s42, s51, 8\nv_lshlrev_b32 v16, 3, v15")
    e("s_waitcnt lgkmcnt(0)")
    srd(e, 8, 34, 64*28*1024, WS_H); srd(e, 16, 34, 7*2048*8, WS_STAT); srd(e, 12, 34, 64*112*1024, WS_G)
    for n in range(28):
        if n % 4 == 0: e(f"s_add_u32 s30, s43, {n*1024}")
        e(f"buffer_load_dwordx4 {vr(B_+4*n,4)}, v24, s[8:11], s30 offen offset:{(n%4)*1024}")
        if n == 3:
            for c in range(7):
                e(f"s_add_u32 s31, s42, {c*16384}\nbuffer_load_dwordx2 {vr(ST_+2*c,2)}, v16, s[16:19], s31 offen")
    e("v_bfe_u32 v11, v0, 4, 1\nv_bfe_u32 v13, v0, 2, 2\nv_and_b32 v14, 3, v0")
    e("v_lshl_add_u32 v17, v12, 2, v13\nv_lshlrev_b32 v17, 8, v17\nv_and_b32 v18, 1, v14\nv_lshl_add_u32 v17, v18, 3, v17")
    e("v_lshrrev_b32 v18, 1, v14\nv_lshl_add_u32 v18, v11, 1, v18\nv_lshlrev_b32 v19, 2, v13")
    for fb in range(4):
        e(f"v_add_u32 v20, {4*fb}, v18\nv_xor_b32 v20, v20, v19\nv_lshl_add_u32 v{2+2*fb}, v20, 4, v17\nv_add_u32 v{3+2*fb}, 0x10000, v{2+2*fb}")
    def reads(n):
        ch, s = n >> 2, n & 3; o = ch*16384 + s*4096; hi = o >> 16; o &= 65535; p = A_ + 16*(n & 1); r = []
        for fb in range(4):
            r.append(f"ds_read_b64_tr_b16 {vr(p+4*fb,2)}, v{2+2*fb+hi} offset:{o}")
            r.append(f"ds_read_b64_tr_b16 {vr(p+4*fb+2,2)}, v{2+2*fb+hi} offset:{o+2048}")
        return r
    st()
    e("s_barrier")
    st()
    for x in reads(0): e(x)
    for n in range(28):
        p = A_ + 16*(n & 1)
        e(f"s_waitcnt vmcnt({min(27-n, 24) if n < 4 else 27-n}) lgkmcnt(0)")
        nxt = reads(n+1) if n < 27 else []
        if nxt and (n+1) % 4 == 0: e("s_barrier")
        for fb in range(4):
            d = vr(ACC+16*fb, 16)
            e(f"v_mfma_f32_32x32x16_bf16 {d}, {vr(p+4*fb,4)}, {vr(B_+4*n,4)}, {'0' if n == 0 else d}")
            if fb < 3:
                for x in nxt[3*fb:3*fb+3 if fb < 2 else 8]: e(x)
    st()
    for c in range(1, 7): e(f"v_pk_add_f32 {vr(ST_,2)}, {vr(ST_,2)}, {vr(ST_+2*c,2)}")
    R, M = ST_, ST_+1
    e(f"s_mov_b32 s29, 0x3b124925\nv_mul_f32 v{M}, s29, v{M}\nv_mul_f32 v{ST_+2}, s29, v{R}")
    e(f"v_fma_f32 v{R}, -v{ST_+2}, v{ST_+2}, v{M}\nv_max_f32 v{R}, 0, v{R}\nv_add_f32 v{R}, 0x3727c5ac, v{R}\nv_rsq_f32 v{R}, v{R}\ns_nop 0")
    e(f"v_mul_f32 v{M}, v{ST_+2}, v{R}")
    e("s_mov_b32 s56, 0xc0135761\ns_mov_b32 s57, 0xbdd2d3e8")
    e(f"v_lshlrev_b32 v18, 4, v12\nv_add_u32 v18, {CSL}, v18")
    CS, BI, U, W, PK = B_, B_+16, B_+32, B_+48, B_+64
    rm = vr(ST_, 2)
    for fb in range(4):
        a = ACC + 16*fb
        for q in range(4):
            e(f"ds_read_b128 {vr(CS+4*q,4)}, v18 offset:{fb*128+32*q}\nds_read_b128 {vr(BI+4*q,4)}, v18 offset:{512+fb*128+32*q}")
        e("s_waitcnt lgkmcnt(0)")
        P = lambda b, r: vr(b+r, 2)
        rs = range(0, 16, 2)
        for r in rs: e(f"v_pk_fma_f32 {P(BI,r)}, {P(CS,r)}, {rm}, {P(BI,r)} op_sel:[0,1,0] op_sel_hi:[1,1,1] neg_lo:[1,0,0] neg_hi:[1,0,0]")
        for r in rs: e(f"v_pk_fma_f32 {P(a,r)}, {P(a,r)}, {rm}, {P(BI,r)} op_sel_hi:[1,0,1]")
        for r in rs: e(f"v_pk_mul_f32 {P(U,r)}, {P(a,r)}, {P(a,r)}")
        for r in rs: e(f"v_pk_fma_f32 {P(U,r)}, {P(U,r)}, s[56:57], s[56:57] op_sel:[0,1,0] op_sel_hi:[1,1,0]")
        for r in rs: e(f"v_pk_mul_f32 {P(U,r)}, {P(U,r)}, {P(a,r)}")
        for r in range(16): e(f"v_exp_f32 v{W+r}, v{U+r}")
        for r in rs: e(f"v_pk_add_f32 {P(W,r)}, {P(W,r)}, 1.0 op_sel_hi:[1,0]")
        for r in range(16): e(f"v_rcp_f32 v{W+r}, v{W+r}")
        for r in rs: e(f"v_pk_mul_f32 {P(a,r)}, {P(a,r)}, {P(W,r)}")
        k = PK + 8*(fb & 1)
        for i in range(8): e(f"v_cvt_pk_bf16_f32 v{k+i}, v{a+2*i}, v{a+2*i+1}")
        e(f"s_mul_i32 s29, s51, 112\ns_lshl_b32 s30, s26, 3\ns_add_u32 s29, s29, s30\ns_add_u32 s29, s29, {2*fb}\ns_lshl_b32 s55, s29, 10")
        e(f"buffer_store_dwordx4 {vr(k,4)}, v24, s[12:15], s55 offen\nbuffer_store_dwordx4 {vr(k+4,4)}, v24, s[12:15], s55 offen offset:1024")
    st.flush(name, 'c')
    e(f"{name}_end:\ns_endpgm")
    return e.text()

def gen_side(e, name):
    e(f"{name}_side:")
    e(f"s_cmp_ge_u32 s2, 220\ns_cbranch_scc1 {name}_end")
    load_ptr(e, 32, 'w1'); load_ptr(e, 34, 'ws'); load_ptr(e, 36, 'b1')
    e(f"s_cmp_lg_u32 s2, 192\ns_cbranch_scc1 {name}_nz")
    e("s_waitcnt lgkmcnt(0)")
    srd(e, 12, 34, 48*128, WS_CNT)
    e("v_lshlrev_b32 v2, 7, v0\nv_mov_b32 v3, 0\nbuffer_store_dword v3, v2, s[12:15], 0 offen")
    e(f"{name}_nz:")
    e("s_sub_u32 s25, s2, 192\nv_lshrrev_b32 v2, 3, v0\nv_and_b32 v3, 7, v0\ns_waitcnt lgkmcnt(0)")
    srd(e, 4, 32, 448*3584); srd(e, 8, 34, 2*7168, WS_CS); srd(e, 12, 36, 3584)
    e("v_mul_u32_u24 v4, 3584, v2\nv_lshl_add_u32 v4, v3, 4, v4\ns_lshl_b32 s26, s25, 7")
    for i in range(7):
        e(f"s_add_u32 s30, s26, {64*i*3584}\nbuffer_load_dwordx4 {vr(32+4*i,4)}, v4, s[4:7], s30 offen")
    e("v_lshlrev_b32 v6, 1, v0\nbuffer_load_ushort v7, v6, s[12:15], s26 offen")
    for r in range(8): e(f"v_mov_b32 v{16+r}, 0")
    for i in range(7):
        e(f"s_waitcnt vmcnt({7-i})")
        unpack_bf16(e, 64, 32+4*i, 4)
        for r in range(0, 8, 2): e(f"v_pk_add_f32 {vr(16+r,2)}, {vr(16+r,2)}, {vr(64+r,2)}")
    e("v_lshlrev_b32 v5, 5, v0\nds_write_b128 v5, v[16:19]\nds_write_b128 v5, v[20:23] offset:16\ns_waitcnt lgkmcnt(0)\ns_barrier")
    e("v_and_b32 v8, 63, v0\nv_lshrrev_b32 v9, 6, v0\nv_lshlrev_b32 v5, 2, v8\nv_lshl_add_u32 v5, v9, 11, v5")
    for k in range(8): e(f"ds_read_b32 v{16+k}, v5 offset:{256*k}")
    e("s_waitcnt lgkmcnt(0)")
    for k in range(1, 8): e(f"v_add_f32 v16, v16, v{16+k}")
    e("s_barrier\nv_lshlrev_b32 v5, 2, v0\nds_write_b32 v5, v16\ns_waitcnt lgkmcnt(0)\ns_barrier")
    e(f"v_cmp_gt_u32 vcc, 64, v0\ns_and_saveexec_b64 s[50:51], vcc\ns_cbranch_execz {name}_end")
    for k in range(8): e(f"ds_read_b32 v{16+k}, v5 offset:{256*k}")
    e("s_waitcnt vmcnt(0) lgkmcnt(0)")
    for k in range(1, 8): e(f"v_add_f32 v16, v16, v{16+k}")
    e("v_lshlrev_b32 v7, 16, v7\ns_lshl_b32 s26, s25, 8\ns_add_u32 s30, s26, 7168")
    e("buffer_store_dword v16, v5, s[8:11], s26 offen\nbuffer_store_dword v7, v5, s[8:11], s30 offen\ns_endpgm")
```

```python
import sys
from common import *
from gemm import gen_gemm
from attn import gen_attn
from t2 import gen_t2
from t1b import gen_ffn1
src = open('sequential_preLN__mha_block__dense_activation_gelu__prompt.s.ref').read().split("\n")
hdr = [l for l in src if l.startswith(";") and "offset" in l.split("shape")[0] or l.startswith("; Kernarg")]
K = [(MAIN, 'qkv', 220, 163840), ("attn_kernel", 'attn', 256, 143616)]
PROF0 = PROF
nk = int(sys.argv[2]) if len(sys.argv) > 2 else len(K)
out = "\n".join(hdr) + "\n"
for n, k, g, lds in K[:nk]:
    out += f"; @launch kernel={n} grid=({g},1,1) block=(512,1,1) lds={lds}\n"
out += '.amdgcn_target "amdgcn-amd-amdhsa--gfx950"\n.text\n'
for n, k, g, lds in K[:nk]:
    import common
    common.PROF = PROF0 if k == 'attn' else 0
    out += gen_attn(n) if k == 'attn' else gen_t2(n, k) if k in ('wo','ffn2') else gen_ffn1(n) if k == 'ffn1' else gen_gemm(n, k)
out += '.section .rodata,"a"\n'
for n, k, g, lds in K[:nk]:
    out += kernel_desc(n)
import os, re
SC = os.environ.get("SC", "")
if SC:
    out = re.sub(r"(buffer_store_dword\w* .* offen[^\n]*)", lambda m: m.group(1) + " " + SC, out)
open(sys.argv[1], "w").write(out)
print(len(out), "bytes")
```

```python
from common import *
import os
PERM = int(os.environ.get('PERM','0'))

Q, O, S, P, KV = 32, 64, 128, 160, 176
MX = 224
RED = 0
XCH = 131072
FLAG = XCH + 4096
QL = XCH + 4096 + 256

def kv(kb): return KV + 16*(kb % 3)

def load_kv(e, kb):
    b = kv(kb)
    e(f"s_add_u32 s30, s42, {kb*2048}")
    e(f"buffer_load_dwordx4 {vr(b,4)}, v1, s[4:7], s30 offen")
    e(f"buffer_load_dwordx4 {vr(b+4,4)}, v1, s[4:7], s30 offen offset:1024")
    e(f"s_add_u32 s30, s30, {2*MB}")
    e(f"buffer_load_dwordx4 {vr(b+8,4)}, v1, s[4:7], s30 offen")
    e(f"buffer_load_dwordx4 {vr(b+12,4)}, v1, s[4:7], s30 offen offset:1024")

def mfma(d, a, b, c):
    return f"v_mfma_f32_32x32x16_bf16 {vr(d,16)}, {vr(a,4)}, {vr(b,4)}, {c}"

def main_pass(e, sub, st=None):
    load_kv(e, 0); load_kv(e, 1)
    for r in range(64): e(f"v_mov_b32 v{O+r}, 0")
    if not sub:
        e(f"s_waitcnt vmcnt(8)\ns_barrier\nv_add_u32 v2, {QL}, v1")
        for k in range(8): e(f"ds_read_b128 {vr(Q+4*k,4)}, v2 offset:{k*1024}")
    def qk(n):
        kb, qb = n >> 2, n & 3; s = S + 16*(n & 1)
        return [mfma(s, kv(kb), Q+8*qb, "0"), mfma(s, kv(kb)+4, Q+8*qb+4, vr(s,16))]
    def pv(n):
        kb, qb = n >> 2, n & 3; p = P + 8*(n & 1); o = O + 16*qb
        return [mfma(o, kv(kb)+8, p, vr(o,16)), mfma(o, kv(kb)+12, p+4, vr(o,16))]
    def valu(n):
        s = S + 16*(n & 1); p = P + 8*(n & 1); qb = n & 3; g = []
        for k in range(4):
            x = []
            if sub: x += [f"v_sub_f32 v{s+4*k+i}, v{s+4*k+i}, v{MX+qb}" for i in range(4)]
            x += [f"v_exp_f32 v{s+4*k+i}, v{s+4*k+i}" for i in range(4)]
            if PERM: x += [f"v_perm_b32 v{p+2*k+i}, v{s+4*k+2*i+1}, v{s+4*k+2*i}, s54" for i in range(2)]
            else: x += [f"v_cvt_pk_bf16_f32 v{p+2*k+i}, v{s+4*k+2*i}, v{s+4*k+2*i+1}" for i in range(2)]
            g.append(x)
        return g
    e("s_waitcnt vmcnt(6) lgkmcnt(0)")
    for x in qk(0): e(x)
    e("s_nop 7\ns_nop 3")
    for n in range(32):
        if n == 1: e("s_waitcnt vmcnt(4)")
        if (n+1) % 4 == 0 and n+1 < 32:
            e(f"s_waitcnt vmcnt({4 if (n+1)//4 < 7 else 0})")
        m = (qk(n+1) if n+1 < 32 else [None, None]) + (pv(n-1) if n else [None, None])
        g = valu(n)
        for k in range(4):
            if m[k]: e(m[k])
            for x in g[k]: e(x)
        if n % 4 == 1 and n//4 + 2 < 8:
            load_kv(e, n//4 + 2)
        if n == 27 and not sub:
            e("buffer_load_dwordx4 v[228:231], v1, s[12:15], s55 offen")
    e("s_nop 1")
    for x in pv(31): e(x)

def reduce_store(e, name):
    e("s_lshl_b32 s29, s24, 14\nv_add_u32 v2, s29, v1\ns_nop 7")
    for qb in range(4):
        for q in range(4):
            e(f"ds_write_b128 v2, {vr(O+16*qb+4*q,4)} offset:{qb*4096+q*1024}")
    e("s_waitcnt lgkmcnt(0)\ns_barrier")
    e("s_lshr_b32 s48, s24, 1\ns_and_b32 s49, s24, 1")
    e("s_lshl_b32 s29, s48, 12\ns_lshl_b32 s30, s49, 11\ns_add_u32 s30, s30, s29\nv_add_u32 v2, s30, v1")
    e("v_add_u32 v3, 0x10000, v2")
    e("v_and_b32 v4, 31, v0\nv_lshlrev_b32 v4, 4, v4\ns_add_u32 s29, s29, 3584\nv_add_u32 v4, s29, v4\nv_add_u32 v5, 0x10000, v4")
    for w in range(8):
        for q in range(2):
            e(f"ds_read_b128 {vr(O+8*w+4*q,4)}, v{2+(w>>2)} offset:{(w&3)*16384+q*1024}")
        e(f"ds_read_b32 v{S+w}, v{4+(w>>2)} offset:{(w&3)*16384}")
        if w == 3: e("s_waitcnt lgkmcnt(6)")
    e("s_waitcnt lgkmcnt(0)")
    for st in (4, 2, 1):
        for w in range(st):
            for r in range(0, 8, 2):
                e(f"v_pk_add_f32 {vr(O+8*w+r,2)}, {vr(O+8*w+r,2)}, {vr(O+8*(w+st)+r,2)}")
            e(f"v_add_f32 v{S+w}, v{S+w}, v{S+w+st}")
    e(f"v_rcp_f32 v{S+1}, v{S}")
    e(f"v_cmp_le_f32 vcc, 0x21800000, v{S}\nv_cmp_ge_f32 s[50:51], s44, v{S}")
    for r in range(8):
        e(f"v_mul_f32 v{O+r}, v{O+r}, v{S+1}")
    e("s_and_b64 s[50:51], s[50:51], vcc")
    e("s_cmp_eq_u32 s49, 1\ns_cselect_b64 s[52:53], s[46:47], 0")
    for r in range(4, 8):
        e(f"v_cndmask_b32 v{O+r}, v{O+r}, 0, s[52:53]")
    for i in range(4):
        e(f"v_cvt_pk_bf16_f32 v{P+i}, v{O+2*i}, v{O+2*i+1}")
    e("s_lshl_b32 s29, s26, 2\ns_add_u32 s29, s29, s48\ns_lshl_b32 s29, s29, 5")
    e("s_lshl_b32 s30, s25, 1\ns_add_u32 s29, s29, s30\ns_add_u32 s29, s29, s49\ns_lshl_b32 s29, s29, 10")
    e(f"buffer_store_dwordx4 {vr(P,4)}, v1, s[8:11], s29 offen sc1")

def gen_attn(name):
    e = Em()
    kernel_head(e, name)
    st = Stamp(e, 12); st.n = 99
    e(f"s_cmp_ge_u32 s2, 256\ns_cbranch_scc1 {name}_end")
    load_ptr(e, 34, 'ws'); load_ptr(e, 36, 'w2'); load_ptr(e, 38, 'wo')
    e("v_lshrrev_b32 v1, 6, v0\nv_and_b32 v0, 63, v0\ns_nop 0\nv_readfirstlane_b32 s24, v1")
    e("s_and_b32 s27, s2, 7\ns_lshr_b32 s28, s2, 3\ns_and_b32 s25, s28, 1\ns_lshl_b32 s27, s27, 1")
    e("s_add_u32 s25, s25, s27\ns_lshr_b32 s26, s28, 1")
    e("s_mov_b32 s46, 0\ns_mov_b32 s47, -1\ns_mov_b32 s44, 0x5d800000\ns_mov_b32 s45, 0\ns_mov_b32 s54, 0x07060302")
    e("v_lshlrev_b32 v1, 4, v0")
    e("s_waitcnt lgkmcnt(0)")
    srd(e, 4, 34, 6*MB, WS_Q); srd(e, 8, 34, 2*MB, WS_O)
    e("s_lshl_b32 s55, s2, 3\ns_add_u32 s55, s55, s24\ns_cmp_lt_u32 s55, 1568")
    e("s_cselect_b32 s12, s36, s38\ns_cselect_b32 s13, s37, s39\ns_mov_b32 s29, 401408\ns_cselect_b32 s14, 1605632, s29\ns_mov_b32 s15, 0x00020000")
    e("s_cselect_b32 s29, 0, 1568\ns_sub_u32 s55, s55, s29\ns_lshl_b32 s55, s55, 10")
    e("s_lshl_b32 s29, s25, 6\ns_lshl_b32 s30, s26, 2\ns_add_u32 s30, s30, s29\ns_lshl_b32 s43, s30, 11")
    e(f"s_lshl_b32 s30, s24, 3\ns_add_u32 s30, s30, s29\ns_lshl_b32 s42, s30, 11\ns_add_u32 s42, s42, {WS_K}")
    e(f"s_lshl_b32 s29, s24, 10\ns_add_u32 m0, s29, {QL}\ns_add_u32 s30, s43, s29")
    e("buffer_load_dwordx4 v1, s[4:7], s30 offen lds")
    e(f"v_mov_b32 v2, {FLAG}\nv_mov_b32 v3, 0\nds_write_b32 v2, v3")
    if int(os.environ.get('SETPRIO','0')):
        e(f"s_cmp_lt_u32 s24, 4\ns_cbranch_scc1 {name}_np\ns_setprio 1\n{name}_np:")
    main_pass(e, False, st)
    e("s_setprio 0")
    e(f"{name}_reduce:")
    reduce_store(e, name)
    e(f"s_cmp_eq_u32 s45, 1\ns_cbranch_scc1 {name}_adone")
    e(f"v_mov_b32 v2, {FLAG}\nv_mov_b32 v3, 1")
    e(f"s_cmp_eq_u64 s[50:51], -1\ns_cbranch_scc1 {name}_ok\nds_write_b32 v2, v3\n{name}_ok:")
    e("s_waitcnt lgkmcnt(0)\ns_barrier\nds_read_b32 v3, v2\ns_waitcnt lgkmcnt(0)\ns_nop 0")
    e(f"v_readfirstlane_b32 s29, v3\ns_nop 3\ns_cmp_eq_u32 s29, 0\ns_cbranch_scc1 {name}_adone")
    e("s_mov_b32 s45, 1\ns_waitcnt vmcnt(0)")
    for qb in range(4): e(f"v_mov_b32 v{MX+qb}, 0xff800000")
    e("s_mov_b32 s48, 0")
    e(f"{name}_mx:")
    e("s_lshl_b32 s30, s48, 11\ns_add_u32 s30, s30, s42")
    e(f"buffer_load_dwordx4 {vr(KV,4)}, v1, s[4:7], s30 offen")
    e(f"buffer_load_dwordx4 {vr(KV+4,4)}, v1, s[4:7], s30 offen offset:1024")
    e("s_waitcnt vmcnt(0)")
    for qb in range(4):
        e(mfma(S, KV, Q+8*qb, "0")); e(mfma(S, KV+4, Q+8*qb+4, vr(S,16)))
        e("s_nop 7\ns_nop 7")
        for r in range(0, 16, 2):
            e(f"v_max3_f32 v{MX+qb}, v{MX+qb}, v{S+r}, v{S+r+1}")
        e("s_nop 7")
    e(f"s_add_u32 s48, s48, 1\ns_cmp_lt_u32 s48, 8\ns_cbranch_scc1 {name}_mx")
    e(f"s_lshl_b32 s29, s24, 9\ns_add_u32 s29, s29, {XCH}\nv_and_b32 v4, 31, v0\nv_lshlrev_b32 v4, 2, v4\nv_add_u32 v2, s29, v4")
    for qb in range(4):
        swap_add(e, MX+qb, 3, "v_max_f32")
        e(f"ds_write_b32 v2, v{MX+qb} offset:{qb*128}")
    e(f"s_waitcnt lgkmcnt(0)\ns_barrier\nv_add_u32 v2, {XCH}, v4")
    for qb in range(4):
        for w in range(8):
            e(f"ds_read_b32 v{S+w}, v2 offset:{w*512+qb*128}")
        e("s_waitcnt lgkmcnt(0)")
        e(f"v_max3_f32 v{MX+qb}, v{S}, v{S+1}, v{S+2}\nv_max3_f32 v{MX+qb}, v{MX+qb}, v{S+3}, v{S+4}")
        e(f"v_max3_f32 v{MX+qb}, v{MX+qb}, v{S+5}, v{S+6}\nv_max_f32 v{MX+qb}, v{MX+qb}, v{S+7}")
    main_pass(e, True)
    e(f"s_branch {name}_reduce")
    e(f"{name}_adone:")
    e("s_waitcnt vmcnt(0)\ns_barrier")
    e(f"s_cmp_lg_u32 s24, 0\ns_cbranch_scc1 {name}_asig")
    e(f"s_lshl_b32 s29, s26, 7\ns_add_u32 s29, s29, {WS_CNT + 128*32}\nv_mov_b32 v2, s29\nv_mov_b32 v3, 1")
    e("s_mov_b64 exec, 1\nglobal_atomic_add v2, v3, s[34:35]\ns_mov_b64 exec, -1")
    e(f"{name}_asig:")
    from mlp import mlp_body
    mlp_body(e, name)
    return e.text()
```

```python
from common import *
from t2 import ACC, BR, AF_, AUX, T, WS_STAT, LST
import t1b
from t1b import A_, B_, ST_, WS_CS
CSL = 135168

def wait_count(e, name, word, n):
    e(f"s_waitcnt lgkmcnt(0)\ns_barrier\ns_mov_b32 s31, 0\ns_cmp_lg_u32 s24, 0\ns_cbranch_scc1 {name}_oQ")
    e(f"s_lshl_b32 s29, s90, 7\ns_add_u32 s29, s29, {WS_CNT + 128*word}\nv_mov_b32 v2, s29\nv_mov_b32 v3, 1\ns_mov_b64 exec, 1")
    e(f"{name}_pQ:\nglobal_load_dword v4, v2, s[34:35] sc1\ns_add_u32 s31, s31, 1\ns_waitcnt vmcnt(0)")
    e(f"v_readfirstlane_b32 s30, v4\ns_nop 1\ns_cmp_ge_u32 s31, 0x100000\ns_cbranch_scc1 {name}_qQ")
    e(f"s_cmp_ge_u32 s30, {n}\ns_cbranch_scc1 {name}_qQ\ns_sleep 3\ns_branch {name}_pQ")
    e(f"{name}_qQ:\ns_mov_b64 exec, -1\nv_mov_b32 v2, {CSL + 1024}\nds_write_b32 v2, v3 offset:4\ns_waitcnt lgkmcnt(0)\ns_branch {name}_wQ")
    e(f"{name}_oQ:\nv_mov_b32 v2, {CSL + 1024}")
    e(f"{name}_lQ:\nds_read_b32 v4, v2 offset:4\ns_add_u32 s31, s31, 1\ns_waitcnt lgkmcnt(0)")
    e(f"v_readfirstlane_b32 s30, v4\ns_nop 1\ns_cmp_ge_u32 s31, 0x1000000\ns_cbranch_scc1 {name}_wQ")
    e(f"s_cmp_eq_u32 s30, 1\ns_cbranch_scc1 {name}_wQ\ns_sleep 1\ns_branch {name}_lQ")
    e(f"{name}_wQ:")

def phase_t2(e, name, kind, st=None):
    wo = kind == 'wo'
    nb, ns, wr = (2, 32, 28) if wo else (7, 112, 32)
    e("v_lshrrev_b32 v2, 3, v0\nv_and_b32 v3, 7, v0\nv_bfe_u32 v4, v0, 4, 1\nv_lshlrev_b32 v4, 2, v4\nv_xor_b32 v3, v3, v4")
    e("v_mul_u32_u24 v2, 896, v2\nv_lshl_add_u32 v10, v3, 4, v2\nv_lshlrev_b32 v11, 4, v0")
    e(f"s_mul_i32 s42, s24, {wr*896}\ns_lshl_b32 s30, s26, 7\ns_add_u32 s42, s42, s30")
    e(f"s_mul_i32 s43, s25, {2*ns*1024}\ns_lshl_b32 s30, s24, 11\ns_add_u32 s43, s43, s30\ns_lshl_b32 s44, s24, 14")
    srd(e, 4, 32 if wo else 84, 448*896 if wo else 1792*896)
    srd(e, 8, 34, 64*ns*1024, WS_O if wo else WS_G)
    ops = []
    def issue(i, dma=True, act=True):
        for j in range(4 if dma else 0):
            ops.append(i)
            e(f"s_add_u32 m0, s44, {(i%4)*4096 + j*1024}\ns_add_u32 s30, s42, {(8*wr*i + 8*j)*896}")
            e("buffer_load_dwordx4 v10, s[4:7], s30 offen lds")
        for sp in range(2 if act else 0):
            for tb in range(2):
                ops.append(i)
                e(f"s_add_u32 s30, s43, {(tb*ns + 16*i + sp)*1024}")
                e(f"buffer_load_dwordx4 {vr(BR+16*(i%4)+8*sp+4*tb,4)}, v11, s[8:11], s30 offen sc1")
    issued = min(nb, 4)
    for i in range(issued): issue(i, wo, not wo)
    e("v_lshrrev_b32 v12, 5, v0\nv_and_b32 v15, 31, v0")
    e("s_lshr_b32 s48, s24, 2\ns_bfe_u32 s50, s24, 0x10001\ns_and_b32 s53, s24, 1")
    e("s_lshl_b32 s29, s25, 1\ns_add_u32 s51, s29, s50\ns_lshl_b32 s29, s26, 1\ns_add_u32 s49, s29, s48")
    e("s_lshl_b32 s29, s51, 5\nv_add_u32 v16, s29, v15\nv_mul_u32_u24 v16, 896, v16\nv_lshl_add_u32 v16, v12, 3, v16")
    e("s_lshl_b32 s52, s49, 6\ns_lshl_b32 s29, s53, 5\ns_add_u32 s52, s52, s29")
    e("s_mul_i32 s29, s51, 28\ns_lshl_b32 s30, s49, 1\ns_add_u32 s29, s29, s30\ns_add_u32 s29, s29, s53\ns_lshl_b32 s55, s29, 10")
    if wo:
        srd(e, 12, 34, 64*28*1024, WS_H); srd(e, 20, 36, 2048*896); srd(e, 16, 34, 7*2048*8, WS_STAT)
        for q in range(2):
            e(f"buffer_load_dwordx2 {vr(AUX+2*q,2)}, v16, s[20:23], s52 offen offset:{16*q}")
        ops.extend([-1]*2)
        wait_count(e, name, 32, 16)
        e("v_lshlrev_b32 v11, 4, v0")
        for i in range(issued): issue(i, False)
    else:
        srd(e, 12, 40, 2048*896); srd(e, 16, 38, 896)
        e("v_lshlrev_b32 v17, 3, v12")
        for q in range(2):
            e(f"buffer_load_dwordx2 {vr(AUX+4+2*q,2)}, v17, s[16:19], s52 offen offset:{16*q}")
        ops.extend([-1]*2)
    e("v_bfe_u32 v13, v0, 2, 2\nv_and_b32 v14, 3, v0\nv_bfe_u32 v18, v0, 4, 1")
    e("v_lshl_add_u32 v19, v12, 2, v13\nv_lshlrev_b32 v19, 7, v19\nv_add_u32 v19, s44, v19")
    e("v_and_b32 v20, 1, v14\nv_lshl_add_u32 v19, v20, 3, v19\nv_lshrrev_b32 v20, 1, v14\nv_lshl_add_u32 v20, v18, 1, v20")
    e("v_lshrrev_b32 v21, 1, v13\nv_lshlrev_b32 v21, 2, v21")
    e("v_xor_b32 v22, v20, v21\nv_lshl_add_u32 v2, v22, 4, v19\nv_add_u32 v20, 4, v20\nv_xor_b32 v22, v20, v21\nv_lshl_add_u32 v4, v22, 4, v19")
    for i in range(nb):
        later = len(ops) - 1 - max(k for k, b in enumerate(ops) if b == i)
        e(f"s_waitcnt vmcnt({later})")
        for sp in range(2):
            for fb in range(2):
                o = (i % 4)*4096 + sp*2048
                e(f"ds_read_b64_tr_b16 {vr(AF_+8*sp+4*fb,2)}, v{2+2*fb} offset:{o}")
                e(f"ds_read_b64_tr_b16 {vr(AF_+8*sp+4*fb+2,2)}, v{2+2*fb} offset:{o+1024}")
        for sp in range(2):
            e(f"s_waitcnt lgkmcnt({4 if sp == 0 else 0})")
            for fb in range(2):
                for tb in range(2):
                    d = vr(ACC+16*(2*fb+tb), 16)
                    e(f"v_mfma_f32_32x32x16_bf16 {d}, {vr(AF_+8*sp+4*fb,4)}, {vr(BR+16*(i%4)+8*sp+4*tb,4)}, {'0' if i == 0 and sp == 0 else d}")
        if issued < nb:
            issue(issued); issued += 1
    if st: st()
    e("v_add_u32 v17, s44, v11\ns_nop 7")
    for b in range(4):
        for q in range(4):
            e(f"ds_write_b128 v17, {vr(ACC+16*b+4*q,4)} offset:{b*4096+q*1024}")
    e("s_waitcnt lgkmcnt(0)\ns_barrier")
    e("s_lshl_b32 s29, s24, 11\nv_add_u32 v17, s29, v11\nv_add_u32 v18, 0x10000, v17")
    for w in range(8):
        for q in range(2):
            e(f"ds_read_b128 {vr(ACC+8*w+4*q,4)}, v{17+(w>>2)} offset:{(w&3)*16384+q*1024}")
    e("s_waitcnt vmcnt(0)")
    if wo:
        unpack_bf16(e, T, AUX, 4)
    else:
        unpack_bf16(e, T, 26, 4); unpack_bf16(e, T+8, AUX+4, 4)
        for r in range(0, 8, 2): e(f"v_pk_add_f32 {vr(T+r,2)}, {vr(T+r,2)}, {vr(T+8+r,2)}")
    e("s_waitcnt lgkmcnt(0)")
    for s_ in (4, 2, 1):
        for w in range(s_):
            for r in range(0, 8, 2):
                e(f"v_pk_add_f32 {vr(ACC+8*w+r,2)}, {vr(ACC+8*w+r,2)}, {vr(ACC+8*(w+s_)+r,2)}")
    for r in range(0, 8, 2): e(f"v_pk_add_f32 {vr(ACC+r,2)}, {vr(ACC+r,2)}, {vr(T+r,2)}")
    for i in range(4): e(f"v_cvt_pk_bf16_f32 v{T+16+i}, v{ACC+2*i}, v{ACC+2*i+1}")
    if wo:
        e(f"buffer_store_dwordx4 {vr(T+16,4)}, v11, s[12:15], s55 offen sc1")
        for k in range(4): e(f"v_mov_b32 v{26+k}, v{T+16+k}")
        unpack_bf16(e, ACC, T+16, 4)
        e(f"v_add_f32 v{T}, v{ACC}, v{ACC+1}\nv_mul_f32 v{T+1}, v{ACC}, v{ACC}\nv_fmac_f32 v{T+1}, v{ACC+1}, v{ACC+1}")
        for r in range(2, 8):
            e(f"v_add_f32 v{T}, v{T}, v{ACC+r}\nv_fmac_f32 v{T+1}, v{ACC+r}, v{ACC+r}")
        e(f"s_lshl_b32 s29, s24, 9\ns_add_u32 s29, s29, {LST}\nv_lshlrev_b32 v3, 3, v0\nv_add_u32 v3, s29, v3")
        e(f"ds_write_b64 v3, {vr(T,2)}\ns_waitcnt lgkmcnt(0)\ns_barrier")
        e(f"s_cmp_ge_u32 s24, 4\ns_cbranch_scc1 {name}_ldA\ns_cmp_lg_u32 s24, 0\ns_cbranch_scc1 {name}_done")
        e(f"v_lshlrev_b32 v3, 3, v15\nv_lshl_add_u32 v3, v12, 10, v3\nv_add_u32 v3, {LST}, v3")
        for k, o in enumerate((0, 256, 512, 768, 2048, 2304, 2560, 2816)):
            e(f"ds_read_b64 {vr(ACC+2*k,2)}, v3 offset:{o}")
        e("s_waitcnt lgkmcnt(0)")
        for k in range(1, 8): e(f"v_pk_add_f32 {vr(ACC,2)}, {vr(ACC,2)}, {vr(ACC+2*k,2)}")
        e(f"v_mov_b32 v4, v{ACC}\nv_mov_b32 v5, v{ACC+1}")
        e("s_lshl_b32 s29, s26, 11\ns_lshl_b32 s30, s25, 6\ns_add_u32 s29, s29, s30\ns_lshl_b32 s29, s29, 3\nv_lshlrev_b32 v3, 3, v0")
        e("buffer_store_dwordx2 v[4:5], v3, s[16:19], s29 offen sc1")
        e(f"{name}_done:")
    else:
        e(f"s_lshl_b32 s29, s50, 5\nv_add_u32 v2, s29, v15\nv_mul_u32_u24 v2, 144, v2\nv_lshl_add_u32 v2, v12, 3, v2")
        e(f"s_lshl_b32 s29, s48, 6\ns_lshl_b32 s30, s53, 5\ns_add_u32 s29, s29, s30\ns_add_u32 s29, s29, {LST}\nv_add_u32 v2, s29, v2")
        e(f"ds_write_b64 v2, {vr(T+16,2)}\nds_write_b64 v2, {vr(T+18,2)} offset:16")
        e("v_lshrrev_b32 v3, 3, v0\nv_and_b32 v4, 7, v0\ns_lshl_b32 s29, s24, 3\nv_add_u32 v3, s29, v3")
        e(f"v_mul_u32_u24 v5, 144, v3\nv_lshl_add_u32 v5, v4, 4, v5\nv_add_u32 v5, {LST}, v5")
        e("s_lshl_b32 s29, s25, 6\nv_add_u32 v3, s29, v3\nv_mul_u32_u24 v3, 896, v3\nv_lshl_add_u32 v3, v4, 4, v3\ns_lshl_b32 s29, s26, 7")
        e("s_waitcnt lgkmcnt(0)\ns_barrier\nds_read_b128 v[8:11], v5\ns_waitcnt lgkmcnt(0)")
        e("buffer_store_dwordx4 v[8:11], v3, s[12:15], s29 offen")

def phase_b(e, name, st):
    e("v_lshlrev_b32 v24, 4, v0\nv_and_b32 v15, 31, v0\nv_lshrrev_b32 v12, 5, v0")
    e("s_lshl_b32 s51, s90, 2\ns_add_u32 s51, s51, s24\ns_mul_i32 s43, s51, 28672\ns_lshl_b32 s42, s51, 8\nv_lshlrev_b32 v16, 3, v15")
    srd(e, 8, 34, 64*28*1024, WS_H); srd(e, 16, 34, 7*2048*8, WS_STAT); srd(e, 12, 34, 64*112*1024, WS_G)
    for n in range(28):
        if n % 4 == 0: e(f"s_add_u32 s30, s43, {n*1024}")
        e(f"buffer_load_dwordx4 {vr(B_+4*n,4)}, v24, s[8:11], s30 offen offset:{(n%4)*1024} sc1")
        if n == 3:
            for c in range(7):
                e(f"s_add_u32 s31, s42, {c*16384}\nbuffer_load_dwordx2 {vr(ST_+2*c,2)}, v16, s[16:19], s31 offen sc1")
    e("v_bfe_u32 v11, v0, 4, 1\nv_bfe_u32 v13, v0, 2, 2\nv_and_b32 v14, 3, v0")
    e("v_lshl_add_u32 v17, v12, 2, v13\nv_lshlrev_b32 v17, 8, v17\nv_and_b32 v18, 1, v14\nv_lshl_add_u32 v17, v18, 3, v17")
    e("v_lshrrev_b32 v18, 1, v14\nv_lshl_add_u32 v18, v11, 1, v18\nv_lshlrev_b32 v19, 2, v13")
    for fb in range(4):
        e(f"v_add_u32 v20, {4*fb}, v18\nv_xor_b32 v20, v20, v19\nv_lshl_add_u32 v{2+2*fb}, v20, 4, v17\nv_add_u32 v{3+2*fb}, 0x10000, v{2+2*fb}")
    def reads(n):
        ch, s = n >> 2, n & 3; o = ch*16384 + s*4096; hi = o >> 16; o &= 65535; p = A_ + 16*(n & 1); r = []
        for fb in range(4):
            r.append(f"ds_read_b64_tr_b16 {vr(p+4*fb,2)}, v{2+2*fb+hi} offset:{o}")
            r.append(f"ds_read_b64_tr_b16 {vr(p+4*fb+2,2)}, v{2+2*fb+hi} offset:{o+2048}")
        return r
    e("s_barrier")
    for x in reads(0): e(x)
    for n in range(28):
        p = A_ + 16*(n & 1)
        e(f"s_waitcnt vmcnt({min(27-n, 24) if n < 4 else 27-n}) lgkmcnt(0)")
        nxt = reads(n+1) if n < 27 else []
        if nxt and (n+1) % 4 == 0: e("s_barrier")
        for fb in range(4):
            d = vr(ACC+16*fb, 16)
            e(f"v_mfma_f32_32x32x16_bf16 {d}, {vr(p+4*fb,4)}, {vr(B_+4*n,4)}, {'0' if n == 0 else d}")
            if fb < 3:
                for x in nxt[3*fb:3*fb+3 if fb < 2 else 8]: e(x)
    st()
    e("s_barrier")
    for c in range(1, 7): e(f"v_pk_add_f32 {vr(ST_,2)}, {vr(ST_,2)}, {vr(ST_+2*c,2)}")
    R, M = ST_, ST_+1
    e(f"s_mov_b32 s29, 0x3b124925\nv_mul_f32 v{M}, s29, v{M}\nv_mul_f32 v{ST_+2}, s29, v{R}")
    e(f"v_fma_f32 v{R}, -v{ST_+2}, v{ST_+2}, v{M}\nv_max_f32 v{R}, 0, v{R}\nv_add_f32 v{R}, 0x3727c5ac, v{R}\nv_rsq_f32 v{R}, v{R}\ns_nop 0")
    e(f"v_mul_f32 v{M}, v{ST_+2}, v{R}")
    e("s_mov_b32 s56, 0xc0135761\ns_mov_b32 s57, 0xbdd2d3e8")
    e(f"v_lshlrev_b32 v18, 4, v12\nv_add_u32 v18, {CSL}, v18")
    CS, BI, U, W, PK = B_, B_+16, B_+32, B_+48, B_+64
    rm = vr(ST_, 2)
    for fb in range(4):
        a = ACC + 16*fb
        for q in range(4):
            e(f"ds_read_b128 {vr(CS+4*q,4)}, v18 offset:{fb*128+32*q}\nds_read_b128 {vr(BI+4*q,4)}, v18 offset:{512+fb*128+32*q}")
        e("s_waitcnt lgkmcnt(0)")
        P = lambda b, r: vr(b+r, 2)
        rs = range(0, 16, 2)
        for r in rs: e(f"v_pk_fma_f32 {P(BI,r)}, {P(CS,r)}, {rm}, {P(BI,r)} op_sel:[0,1,0] op_sel_hi:[1,1,1] neg_lo:[1,0,0] neg_hi:[1,0,0]")
        for r in rs: e(f"v_pk_fma_f32 {P(a,r)}, {P(a,r)}, {rm}, {P(BI,r)} op_sel_hi:[1,0,1]")
        for r in rs: e(f"v_pk_mul_f32 {P(U,r)}, {P(a,r)}, {P(a,r)}")
        for r in rs: e(f"v_pk_fma_f32 {P(U,r)}, {P(U,r)}, s[56:57], s[56:57] op_sel:[0,1,0] op_sel_hi:[1,1,0]")
        for r in rs: e(f"v_pk_mul_f32 {P(U,r)}, {P(U,r)}, {P(a,r)}")
        for r in range(16): e(f"v_exp_f32 v{W+r}, v{U+r}")
        for r in rs: e(f"v_pk_add_f32 {P(W,r)}, {P(W,r)}, 1.0 op_sel_hi:[1,0]")
        for r in range(16): e(f"v_rcp_f32 v{W+r}, v{W+r}")
        for r in rs: e(f"v_pk_mul_f32 {P(a,r)}, {P(a,r)}, {P(W,r)}")
        k = PK + 8*(fb & 1)
        for i in range(8): e(f"v_cvt_pk_bf16_f32 v{k+i}, v{a+2*i}, v{a+2*i+1}")
        e(f"s_mul_i32 s29, s51, 112\ns_lshl_b32 s30, s91, 3\ns_add_u32 s29, s29, s30\ns_add_u32 s29, s29, {2*fb}\ns_lshl_b32 s55, s29, 10")
        e(f"buffer_store_dwordx4 {vr(k,4)}, v24, s[12:15], s55 offen sc1\nbuffer_store_dwordx4 {vr(k+4,4)}, v24, s[12:15], s55 offen offset:1024 sc1")

FLG = CSL + 1024

def signal_and_poll(e, name, tag, word, lds_flag):
    e(f"s_mov_b32 s31, 0\ns_cmp_lg_u32 s24, 0\ns_cbranch_scc1 {name}_o{tag}")
    e(f"s_lshl_b32 s29, s90, 7\ns_add_u32 s29, s29, {WS_CNT + 128*word}\nv_mov_b32 v2, s29\nv_mov_b32 v3, 1")
    e("s_mov_b64 exec, 1\nglobal_atomic_add v2, v3, s[34:35]")
    e(f"{name}_p{tag}:\nglobal_load_dword v4, v2, s[34:35] sc1\ns_add_u32 s31, s31, 1\ns_waitcnt vmcnt(0)")
    e(f"v_readfirstlane_b32 s30, v4\ns_nop 1\ns_cmp_ge_u32 s31, 0x100000\ns_cbranch_scc1 {name}_q{tag}")
    e(f"s_cmp_ge_u32 s30, 14\ns_cbranch_scc1 {name}_q{tag}\ns_sleep 3\ns_branch {name}_p{tag}")
    e(f"{name}_q{tag}:\ns_mov_b64 exec, -1")
    if lds_flag:
        e(f"v_mov_b32 v2, {FLG}\nds_write_b32 v2, v3\ns_waitcnt lgkmcnt(0)\ns_branch {name}_w{tag}")
        e(f"{name}_o{tag}:\nv_mov_b32 v2, {FLG}")
        e(f"{name}_l{tag}:\nds_read_b32 v4, v2\ns_add_u32 s31, s31, 1\ns_waitcnt lgkmcnt(0)")
        e(f"v_readfirstlane_b32 s30, v4\ns_nop 1\ns_cmp_ge_u32 s31, 0x1000000\ns_cbranch_scc1 {name}_w{tag}")
        e(f"s_cmp_eq_u32 s30, 1\ns_cbranch_scc1 {name}_w{tag}\ns_sleep 1\ns_branch {name}_l{tag}")
        e(f"{name}_w{tag}:")
    else:
        e(f"{name}_o{tag}:\ns_barrier")

def mlp_body(e, name):
    st = Stamp(e, 40); st()
    e(f"s_cmp_ge_u32 s2, 224\ns_cbranch_scc1 {name}_end")
    for r, a in ((32,'wo'),(36,'x'),(38,'b2'),(40,'out'),(58,'w1'),(84,'w2')): load_ptr(e, r, a)
    e("s_and_b32 s27, s2, 7\ns_lshr_b32 s28, s2, 3")
    e("s_and_b32 s29, s28, 1\ns_lshl_b32 s90, s27, 1\ns_add_u32 s90, s90, s29\ns_lshr_b32 s91, s28, 1")
    e("s_and_b32 s29, s91, 1\ns_lshl_b32 s92, s90, 1\ns_add_u32 s92, s92, s29\ns_lshr_b32 s93, s91, 1")
    e("s_mov_b32 s25, s92\ns_mov_b32 s26, s93\ns_waitcnt lgkmcnt(0)")
    e(f"v_mov_b32 v2, {FLG}\nv_mov_b32 v3, 0\nds_write_b32 v2, v3\nds_write_b32 v2, v3 offset:4")
    phase_t2(e, name, 'wo')
    e("s_waitcnt vmcnt(0)")
    st()
    e("s_barrier")
    signal_and_poll(e, name, 'A', 0, True)
    st()
    e(f"s_branch {name}_cB")
    e(f"{name}_ldA:")
    e("s_sub_u32 s30, s24, 4\ns_lshl_b32 s44, s30, 12")
    e("v_lshrrev_b32 v2, 4, v0\nv_and_b32 v3, 15, v0\nv_lshlrev_b32 v4, 2, v2\nv_xor_b32 v3, v3, v4")
    e("v_mul_u32_u24 v2, 3584, v2\nv_lshl_add_u32 v10, v3, 4, v2\nv_lshlrev_b32 v11, 2, v0")
    e(f"s_mul_i32 s42, s30, {16*3584}\ns_lshl_b32 s31, s91, 8\ns_add_u32 s42, s42, s31")
    e("s_and_b32 s31, s30, 1\ns_lshl_b32 s31, s31, 8\ns_lshr_b32 s29, s30, 1\ns_mul_i32 s43, s29, 7168\ns_add_u32 s43, s43, s31")
    e(f"s_lshl_b32 s31, s91, 9\ns_add_u32 s43, s43, s31\ns_lshl_b32 s45, s30, 8\ns_add_u32 s45, s45, {CSL}")
    srd(e, 4, 58, 448*3584); srd(e, 8, 34, 2*7168, WS_CS)
    e("s_waitcnt vmcnt(0)\ns_barrier")
    e("s_mov_b32 m0, s45\ns_nop 0\nbuffer_load_dword v11, s[8:11], s43 offen lds")
    def issue(ch):
        for i in range(4):
            e(f"s_add_u32 m0, s44, {ch*16384 + i*1024}\ns_add_u32 s30, s42, {(64*ch + 4*i)*3584}")
            e("buffer_load_dwordx4 v10, s[4:7], s30 offen lds")
    issued = 3
    for ch in range(issued): issue(ch)
    for ch in range(7):
        e(f"s_waitcnt vmcnt({4*(issued-ch-1)})\ns_barrier")
        while issued < min(7, ch + 5): issue(issued); issued += 1
    e("s_barrier")
    srd(e, 4, 84, 1792*896)
    e("v_lshrrev_b32 v2, 3, v0\nv_and_b32 v3, 7, v0\nv_bfe_u32 v4, v0, 4, 1\nv_lshlrev_b32 v4, 2, v4\nv_xor_b32 v3, v3, v4")
    e("v_mul_u32_u24 v2, 896, v2\nv_lshl_add_u32 v10, v3, 4, v2")
    for dw in (4, 0):
        e(f"s_sub_u32 s31, s24, {dw}\ns_mul_i32 s42, s31, {32*896}\ns_lshl_b32 s30, s93, 7\ns_add_u32 s42, s42, s30\ns_lshl_b32 s44, s31, 14")
        for i in range(4):
            for j in range(4):
                e(f"s_add_u32 m0, s44, {i*4096 + j*1024}\ns_add_u32 s30, s42, {(8*32*i + 8*j)*896}")
                e("buffer_load_dwordx4 v10, s[4:7], s30 offen lds")
    e(f"s_barrier\ns_waitcnt vmcnt(0)\ns_barrier\ns_branch {name}_C")
    e(f"{name}_cB:")
    phase_b(e, name, st)
    e("s_waitcnt vmcnt(0)")
    st()
    e("s_barrier")
    signal_and_poll(e, name, 'B', 16, False)
    st()
    e(f"{name}_C:")
    phase_t2(e, name, 'ffn2', st)
    st.flush(name, 'c')
    e(f"{name}_end:\ns_endpgm")
```

```python
from common import *
from t2 import ACC, BR, AF_, AUX, T, WS_STAT, LST
import t1b
from t1b import A_, B_, ST_, WS_CS
CSL = 135168

def wait_count(e, name, word, n):
    e(f"s_waitcnt lgkmcnt(0)\ns_barrier\ns_mov_b32 s31, 0\ns_cmp_lg_u32 s24, 0\ns_cbranch_scc1 {name}_oQ")
    e(f"s_lshl_b32 s29, s90, 7\ns_add_u32 s29, s29, {WS_CNT + 128*word}\nv_mov_b32 v2, s29\nv_mov_b32 v3, 1\ns_mov_b64 exec, 1")
    e(f"{name}_pQ:\nglobal_load_dword v4, v2, s[34:35] sc1\ns_add_u32 s31, s31, 1\ns_waitcnt vmcnt(0)")
    e(f"v_readfirstlane_b32 s30, v4\ns_nop 1\ns_cmp_ge_u32 s31, 0x100000\ns_cbranch_scc1 {name}_qQ")
    e(f"s_cmp_ge_u32 s30, {n}\ns_cbranch_scc1 {name}_qQ\ns_sleep 3\ns_branch {name}_pQ")
    e(f"{name}_qQ:\ns_mov_b64 exec, -1\nv_mov_b32 v2, {CSL + 1024}\nds_write_b32 v2, v3 offset:4\ns_waitcnt lgkmcnt(0)\ns_branch {name}_wQ")
    e(f"{name}_oQ:\nv_mov_b32 v2, {CSL + 1024}")
    e(f"{name}_lQ:\nds_read_b32 v4, v2 offset:4\ns_add_u32 s31, s31, 1\ns_waitcnt lgkmcnt(0)")
    e(f"v_readfirstlane_b32 s30, v4\ns_nop 1\ns_cmp_ge_u32 s31, 0x1000000\ns_cbranch_scc1 {name}_wQ")
    e(f"s_cmp_eq_u32 s30, 1\ns_cbranch_scc1 {name}_wQ\ns_sleep 1\ns_branch {name}_lQ")
    e(f"{name}_wQ:")

def phase_t2(e, name, kind, st=None):
    wo = kind == 'wo'
    nb, ns, wr = (2, 32, 28) if wo else (7, 112, 32)
    e("v_lshrrev_b32 v2, 3, v0\nv_and_b32 v3, 7, v0\nv_bfe_u32 v4, v0, 4, 1\nv_lshlrev_b32 v4, 2, v4\nv_xor_b32 v3, v3, v4")
    e("v_mul_u32_u24 v2, 896, v2\nv_lshl_add_u32 v10, v3, 4, v2\nv_lshlrev_b32 v11, 4, v0")
    e(f"s_mul_i32 s42, s24, {wr*896}\ns_lshl_b32 s30, s26, 7\ns_add_u32 s42, s42, s30")
    e(f"s_mul_i32 s43, s25, {2*ns*1024}\ns_lshl_b32 s30, s24, 11\ns_add_u32 s43, s43, s30\ns_lshl_b32 s44, s24, 14")
    srd(e, 4, 32 if wo else 84, 448*896 if wo else 1792*896)
    srd(e, 8, 34, 64*ns*1024, WS_O if wo else WS_G)
    ops = []
    def issue(i, dma=True, act=True):
        for j in range(4 if dma else 0):
            ops.append(i)
            e(f"s_add_u32 m0, s44, {(i%4)*4096 + j*1024}\ns_add_u32 s30, s42, {(8*wr*i + 8*j)*896}")
            e("buffer_load_dwordx4 v10, s[4:7], s30 offen lds")
        for sp in range(2 if act else 0):
            for tb in range(2):
                ops.append(i)
                e(f"s_add_u32 s30, s43, {(tb*ns + 16*i + sp)*1024}")
                e(f"buffer_load_dwordx4 {vr(BR+16*(i%4)+8*sp+4*tb,4)}, v11, s[8:11], s30 offen sc1")
    issued = min(nb, 4)
    for i in range(issued): issue(i, wo, not wo)
    e("v_lshrrev_b32 v12, 5, v0\nv_and_b32 v15, 31, v0")
    e("s_lshr_b32 s48, s24, 2\ns_bfe_u32 s50, s24, 0x10001\ns_and_b32 s53, s24, 1")
    e("s_lshl_b32 s29, s25, 1\ns_add_u32 s51, s29, s50\ns_lshl_b32 s29, s26, 1\ns_add_u32 s49, s29, s48")
    e("s_lshl_b32 s29, s51, 5\nv_add_u32 v16, s29, v15\nv_mul_u32_u24 v16, 896, v16\nv_lshl_add_u32 v16, v12, 3, v16")
    e("s_lshl_b32 s52, s49, 6\ns_lshl_b32 s29, s53, 5\ns_add_u32 s52, s52, s29")
    e("s_mul_i32 s29, s51, 28\ns_lshl_b32 s30, s49, 1\ns_add_u32 s29, s29, s30\ns_add_u32 s29, s29, s53\ns_lshl_b32 s55, s29, 10")
    if wo:
        srd(e, 12, 34, 64*28*1024, WS_H); srd(e, 20, 36, 2048*896); srd(e, 16, 34, 7*2048*8, WS_STAT)
        for q in range(2):
            e(f"buffer_load_dwordx2 {vr(AUX+2*q,2)}, v16, s[20:23], s52 offen offset:{16*q}")
        ops.extend([-1]*2)
        wait_count(e, name, 32, 16)
        e("v_lshlrev_b32 v11, 4, v0")
        for i in range(issued): issue(i, False)
    else:
        srd(e, 12, 40, 2048*896); srd(e, 16, 38, 896)
        e("v_lshlrev_b32 v17, 3, v12")
        for q in range(2):
            e(f"buffer_load_dwordx2 {vr(AUX+4+2*q,2)}, v17, s[16:19], s52 offen offset:{16*q}")
        ops.extend([-1]*2)
    e("v_bfe_u32 v13, v0, 2, 2\nv_and_b32 v14, 3, v0\nv_bfe_u32 v18, v0, 4, 1")
    e("v_lshl_add_u32 v19, v12, 2, v13\nv_lshlrev_b32 v19, 7, v19\nv_add_u32 v19, s44, v19")
    e("v_and_b32 v20, 1, v14\nv_lshl_add_u32 v19, v20, 3, v19\nv_lshrrev_b32 v20, 1, v14\nv_lshl_add_u32 v20, v18, 1, v20")
    e("v_lshrrev_b32 v21, 1, v13\nv_lshlrev_b32 v21, 2, v21")
    e("v_xor_b32 v22, v20, v21\nv_lshl_add_u32 v2, v22, 4, v19\nv_add_u32 v20, 4, v20\nv_xor_b32 v22, v20, v21\nv_lshl_add_u32 v4, v22, 4, v19")
    for i in range(nb):
        later = len(ops) - 1 - max(k for k, b in enumerate(ops) if b == i)
        e(f"s_waitcnt vmcnt({later})")
        for sp in range(2):
            for fb in range(2):
                o = (i % 4)*4096 + sp*2048
                e(f"ds_read_b64_tr_b16 {vr(AF_+8*sp+4*fb,2)}, v{2+2*fb} offset:{o}")
                e(f"ds_read_b64_tr_b16 {vr(AF_+8*sp+4*fb+2,2)}, v{2+2*fb} offset:{o+1024}")
        for sp in range(2):
            e(f"s_waitcnt lgkmcnt({4 if sp == 0 else 0})")
            for fb in range(2):
                for tb in range(2):
                    d = vr(ACC+16*(2*fb+tb), 16)
                    e(f"v_mfma_f32_32x32x16_bf16 {d}, {vr(AF_+8*sp+4*fb,4)}, {vr(BR+16*(i%4)+8*sp+4*tb,4)}, {'0' if i == 0 and sp == 0 else d}")
        if issued < nb:
            issue(issued); issued += 1
    if st: st()
    e("v_add_u32 v17, s44, v11\ns_nop 7")
    for b in range(4):
        for q in range(4):
            e(f"ds_write_b128 v17, {vr(ACC+16*b+4*q,4)} offset:{b*4096+q*1024}")
    e("s_waitcnt lgkmcnt(0)\ns_barrier")
    e("s_lshl_b32 s29, s24, 11\nv_add_u32 v17, s29, v11\nv_add_u32 v18, 0x10000, v17")
    for w in range(8):
        for q in range(2):
            e(f"ds_read_b128 {vr(ACC+8*w+4*q,4)}, v{17+(w>>2)} offset:{(w&3)*16384+q*1024}")
    e("s_waitcnt vmcnt(0)")
    if wo:
        unpack_bf16(e, T, AUX, 4)
    else:
        unpack_bf16(e, T, 26, 4); unpack_bf16(e, T+8, AUX+4, 4)
        for r in range(0, 8, 2): e(f"v_pk_add_f32 {vr(T+r,2)}, {vr(T+r,2)}, {vr(T+8+r,2)}")
    e("s_waitcnt lgkmcnt(0)")
    for s_ in (4, 2, 1):
        for w in range(s_):
            for r in range(0, 8, 2):
                e(f"v_pk_add_f32 {vr(ACC+8*w+r,2)}, {vr(ACC+8*w+r,2)}, {vr(ACC+8*(w+s_)+r,2)}")
    for r in range(0, 8, 2): e(f"v_pk_add_f32 {vr(ACC+r,2)}, {vr(ACC+r,2)}, {vr(T+r,2)}")
    for i in range(4): e(f"v_cvt_pk_bf16_f32 v{T+16+i}, v{ACC+2*i}, v{ACC+2*i+1}")
    if wo:
        e(f"buffer_store_dwordx4 {vr(T+16,4)}, v11, s[12:15], s55 offen sc1")
        for k in range(4): e(f"v_mov_b32 v{26+k}, v{T+16+k}")
        unpack_bf16(e, ACC, T+16, 4)
        e(f"v_add_f32 v{T}, v{ACC}, v{ACC+1}\nv_mul_f32 v{T+1}, v{ACC}, v{ACC}\nv_fmac_f32 v{T+1}, v{ACC+1}, v{ACC+1}")
        for r in range(2, 8):
            e(f"v_add_f32 v{T}, v{T}, v{ACC+r}\nv_fmac_f32 v{T+1}, v{ACC+r}, v{ACC+r}")
        e(f"s_lshl_b32 s29, s24, 9\ns_add_u32 s29, s29, {LST}\nv_lshlrev_b32 v3, 3, v0\nv_add_u32 v3, s29, v3")
        e(f"ds_write_b64 v3, {vr(T,2)}\ns_waitcnt lgkmcnt(0)\ns_barrier")
        e(f"s_cmp_ge_u32 s24, 4\ns_cbranch_scc1 {name}_ldA\ns_cmp_lg_u32 s24, 0\ns_cbranch_scc1 {name}_done")
        e(f"v_lshlrev_b32 v3, 3, v15\nv_lshl_add_u32 v3, v12, 10, v3\nv_add_u32 v3, {LST}, v3")
        for k, o in enumerate((0, 256, 512, 768, 2048, 2304, 2560, 2816)):
            e(f"ds_read_b64 {vr(ACC+2*k,2)}, v3 offset:{o}")
        e("s_waitcnt lgkmcnt(0)")
        for k in range(1, 8): e(f"v_pk_add_f32 {vr(ACC,2)}, {vr(ACC,2)}, {vr(ACC+2*k,2)}")
        e(f"v_mov_b32 v4, v{ACC}\nv_mov_b32 v5, v{ACC+1}")
        e("s_lshl_b32 s29, s26, 11\ns_lshl_b32 s30, s25, 6\ns_add_u32 s29, s29, s30\ns_lshl_b32 s29, s29, 3\nv_lshlrev_b32 v3, 3, v0")
        e("buffer_store_dwordx2 v[4:5], v3, s[16:19], s29 offen sc1")
        e(f"{name}_done:")
    else:
        e(f"s_lshl_b32 s29, s50, 5\nv_add_u32 v2, s29, v15\nv_mul_u32_u24 v2, 144, v2\nv_lshl_add_u32 v2, v12, 3, v2")
        e(f"s_lshl_b32 s29, s48, 6\ns_lshl_b32 s30, s53, 5\ns_add_u32 s29, s29, s30\ns_add_u32 s29, s29, {LST}\nv_add_u32 v2, s29, v2")
        e(f"ds_write_b64 v2, {vr(T+16,2)}\nds_write_b64 v2, {vr(T+18,2)} offset:16")
        e("v_lshrrev_b32 v3, 3, v0\nv_and_b32 v4, 7, v0\ns_lshl_b32 s29, s24, 3\nv_add_u32 v3, s29, v3")
        e(f"v_mul_u32_u24 v5, 144, v3\nv_lshl_add_u32 v5, v4, 4, v5\nv_add_u32 v5, {LST}, v5")
        e("s_lshl_b32 s29, s25, 6\nv_add_u32 v3, s29, v3\nv_mul_u32_u24 v3, 896, v3\nv_lshl_add_u32 v3, v4, 4, v3\ns_lshl_b32 s29, s26, 7")
        e("s_waitcnt lgkmcnt(0)\ns_barrier\nds_read_b128 v[8:11], v5\ns_waitcnt lgkmcnt(0)")
        e("buffer_store_dwordx4 v[8:11], v3, s[12:15], s29 offen")

def phase_b(e, name, st):
    e("v_lshlrev_b32 v24, 4, v0\nv_and_b32 v15, 31, v0\nv_lshrrev_b32 v12, 5, v0")
    e("s_lshl_b32 s51, s90, 2\ns_add_u32 s51, s51, s24\ns_mul_i32 s43, s51, 28672\ns_lshl_b32 s42, s51, 8\nv_lshlrev_b32 v16, 3, v15")
    srd(e, 8, 34, 64*28*1024, WS_H); srd(e, 16, 34, 7*2048*8, WS_STAT); srd(e, 12, 34, 64*112*1024, WS_G)
    for n in range(28):
        if n % 4 == 0: e(f"s_add_u32 s30, s43, {n*1024}")
        e(f"buffer_load_dwordx4 {vr(B_+4*n,4)}, v24, s[8:11], s30 offen offset:{(n%4)*1024} sc1")
        if n == 3:
            for c in range(7):
                e(f"s_add_u32 s31, s42, {c*16384}\nbuffer_load_dwordx2 {vr(ST_+2*c,2)}, v16, s[16:19], s31 offen sc1")
    e("v_bfe_u32 v11, v0, 4, 1\nv_bfe_u32 v13, v0, 2, 2\nv_and_b32 v14, 3, v0")
    e("v_lshl_add_u32 v17, v12, 2, v13\nv_lshlrev_b32 v17, 8, v17\nv_and_b32 v18, 1, v14\nv_lshl_add_u32 v17, v18, 3, v17")
    e("v_lshrrev_b32 v18, 1, v14\nv_lshl_add_u32 v18, v11, 1, v18\nv_lshlrev_b32 v19, 2, v13")
    for fb in range(4):
        e(f"v_add_u32 v20, {4*fb}, v18\nv_xor_b32 v20, v20, v19\nv_lshl_add_u32 v{2+2*fb}, v20, 4, v17\nv_add_u32 v{3+2*fb}, 0x10000, v{2+2*fb}")
    def reads(n):
        ch, s = n >> 2, n & 3; o = ch*16384 + s*4096; hi = o >> 16; o &= 65535; p = A_ + 16*(n & 1); r = []
        for fb in range(4):
            r.append(f"ds_read_b64_tr_b16 {vr(p+4*fb,2)}, v{2+2*fb+hi} offset:{o}")
            r.append(f"ds_read_b64_tr_b16 {vr(p+4*fb+2,2)}, v{2+2*fb+hi} offset:{o+2048}")
        return r
    e("s_barrier")
    for x in reads(0): e(x)
    for n in range(28):
        p = A_ + 16*(n & 1)
        e(f"s_waitcnt vmcnt({min(27-n, 24) if n < 4 else 27-n}) lgkmcnt(0)")
        nxt = reads(n+1) if n < 27 else []
        if nxt and (n+1) % 4 == 0: e("s_barrier")
        for fb in range(4):
            d = vr(ACC+16*fb, 16)
            e(f"v_mfma_f32_32x32x16_bf16 {d}, {vr(p+4*fb,4)}, {vr(B_+4*n,4)}, {'0' if n == 0 else d}")
            if fb < 3:
                for x in nxt[3*fb:3*fb+3 if fb < 2 else 8]: e(x)
    st()
    e("s_barrier")
    for c in range(1, 7): e(f"v_pk_add_f32 {vr(ST_,2)}, {vr(ST_,2)}, {vr(ST_+2*c,2)}")
    R, M = ST_, ST_+1
    e(f"s_mov_b32 s29, 0x3b124925\nv_mul_f32 v{M}, s29, v{M}\nv_mul_f32 v{ST_+2}, s29, v{R}")
    e(f"v_fma_f32 v{R}, -v{ST_+2}, v{ST_+2}, v{M}\nv_max_f32 v{R}, 0, v{R}\nv_add_f32 v{R}, 0x3727c5ac, v{R}\nv_rsq_f32 v{R}, v{R}\ns_nop 0")
    e(f"v_mul_f32 v{M}, v{ST_+2}, v{R}")
    e("s_mov_b32 s56, 0xc0135761\ns_mov_b32 s57, 0xbdd2d3e8")
    e(f"v_lshlrev_b32 v18, 4, v12\nv_add_u32 v18, {CSL}, v18")
    CS, BI, U, W, PK = B_, B_+16, B_+32, B_+48, B_+64
    rm = vr(ST_, 2)
    def cs_reads(fb):
        c0, b0 = (B_, B_+16) if fb % 2 == 0 else (B_+80, B_+96)
        for q in range(4):
            e(f"ds_read_b128 {vr(c0+4*q,4)}, v18 offset:{fb*128+32*q}\nds_read_b128 {vr(b0+4*q,4)}, v18 offset:{512+fb*128+32*q}")
    cs_reads(0)
    CS0, BI0 = CS, BI
    for fb in range(4):
        a = ACC + 16*fb
        e("s_waitcnt lgkmcnt(0)")
        CS, BI = (CS0, BI0)
        if fb < 3: cs_reads(fb+1)
        CS, BI = (CS0, BI0) if fb % 2 == 0 else (B_+80, B_+96)
        P = lambda b, r: vr(b+r, 2)
        rs = range(0, 16, 2)
        for r in rs: e(f"v_pk_fma_f32 {P(BI,r)}, {P(CS,r)}, {rm}, {P(BI,r)} op_sel:[0,1,0] op_sel_hi:[1,1,1] neg_lo:[1,0,0] neg_hi:[1,0,0]")
        for r in rs: e(f"v_pk_fma_f32 {P(a,r)}, {P(a,r)}, {rm}, {P(BI,r)} op_sel_hi:[1,0,1]")
        for r in rs: e(f"v_pk_mul_f32 {P(U,r)}, {P(a,r)}, {P(a,r)}")
        for r in rs: e(f"v_pk_fma_f32 {P(U,r)}, {P(U,r)}, s[56:57], s[56:57] op_sel:[0,1,0] op_sel_hi:[1,1,0]")
        for r in rs: e(f"v_pk_mul_f32 {P(U,r)}, {P(U,r)}, {P(a,r)}")
        for r in range(16): e(f"v_exp_f32 v{W+r}, v{U+r}")
        for r in rs: e(f"v_pk_add_f32 {P(W,r)}, {P(W,r)}, 1.0 op_sel_hi:[1,0]")
        for r in range(16): e(f"v_rcp_f32 v{W+r}, v{W+r}")
        for r in rs: e(f"v_pk_mul_f32 {P(a,r)}, {P(a,r)}, {P(W,r)}")
        k = PK + 8*(fb & 1)
        for i in range(8): e(f"v_cvt_pk_bf16_f32 v{k+i}, v{a+2*i}, v{a+2*i+1}")
        e(f"s_mul_i32 s29, s51, 112\ns_lshl_b32 s30, s91, 3\ns_add_u32 s29, s29, s30\ns_add_u32 s29, s29, {2*fb}\ns_lshl_b32 s55, s29, 10")
        e(f"buffer_store_dwordx4 {vr(k,4)}, v24, s[12:15], s55 offen sc1\nbuffer_store_dwordx4 {vr(k+4,4)}, v24, s[12:15], s55 offen offset:1024 sc1")

FLG = CSL + 1024

def signal_and_poll(e, name, tag, word, lds_flag):
    e(f"s_mov_b32 s31, 0\ns_cmp_lg_u32 s24, 0\ns_cbranch_scc1 {name}_o{tag}")
    e(f"s_lshl_b32 s29, s90, 7\ns_add_u32 s29, s29, {WS_CNT + 128*word}\nv_mov_b32 v2, s29\nv_mov_b32 v3, 1")
    e("s_mov_b64 exec, 1\nglobal_atomic_add v2, v3, s[34:35]")
    e(f"{name}_p{tag}:\nglobal_load_dword v4, v2, s[34:35] sc1\ns_add_u32 s31, s31, 1\ns_waitcnt vmcnt(0)")
    e(f"v_readfirstlane_b32 s30, v4\ns_nop 1\ns_cmp_ge_u32 s31, 0x100000\ns_cbranch_scc1 {name}_q{tag}")
    e(f"s_cmp_ge_u32 s30, 14\ns_cbranch_scc1 {name}_q{tag}\ns_sleep 3\ns_branch {name}_p{tag}")
    e(f"{name}_q{tag}:\ns_mov_b64 exec, -1")
    if lds_flag:
        e(f"v_mov_b32 v2, {FLG}\nds_write_b32 v2, v3\ns_waitcnt lgkmcnt(0)\ns_branch {name}_w{tag}")
        e(f"{name}_o{tag}:\nv_mov_b32 v2, {FLG}")
        e(f"{name}_l{tag}:\nds_read_b32 v4, v2\ns_add_u32 s31, s31, 1\ns_waitcnt lgkmcnt(0)")
        e(f"v_readfirstlane_b32 s30, v4\ns_nop 1\ns_cmp_ge_u32 s31, 0x1000000\ns_cbranch_scc1 {name}_w{tag}")
        e(f"s_cmp_eq_u32 s30, 1\ns_cbranch_scc1 {name}_w{tag}\ns_sleep 1\ns_branch {name}_l{tag}")
        e(f"{name}_w{tag}:")
    else:
        e(f"{name}_o{tag}:\ns_barrier")

def mlp_body(e, name):
    st = Stamp(e, 40); st()
    e(f"s_cmp_ge_u32 s2, 224\ns_cbranch_scc1 {name}_end")
    for r, a in ((32,'wo'),(36,'x'),(38,'b2'),(40,'out'),(58,'w1'),(84,'w2')): load_ptr(e, r, a)
    e("s_and_b32 s27, s2, 7\ns_lshr_b32 s28, s2, 3")
    e("s_and_b32 s29, s28, 1\ns_lshl_b32 s90, s27, 1\ns_add_u32 s90, s90, s29\ns_lshr_b32 s91, s28, 1")
    e("s_and_b32 s29, s91, 1\ns_lshl_b32 s92, s90, 1\ns_add_u32 s92, s92, s29\ns_lshr_b32 s93, s91, 1")
    e("s_mov_b32 s25, s92\ns_mov_b32 s26, s93\ns_waitcnt lgkmcnt(0)")
    e(f"v_mov_b32 v2, {FLG}\nv_mov_b32 v3, 0\nds_write_b32 v2, v3\nds_write_b32 v2, v3 offset:4")
    phase_t2(e, name, 'wo')
    e("s_waitcnt vmcnt(0)")
    st()
    e("s_barrier")
    signal_and_poll(e, name, 'A', 0, True)
    st()
    e(f"s_branch {name}_cB")
    e(f"{name}_ldA:")
    e("s_sub_u32 s30, s24, 4\ns_lshl_b32 s44, s30, 12")
    e("v_lshrrev_b32 v2, 4, v0\nv_and_b32 v3, 15, v0\nv_lshlrev_b32 v4, 2, v2\nv_xor_b32 v3, v3, v4")
    e("v_mul_u32_u24 v2, 3584, v2\nv_lshl_add_u32 v10, v3, 4, v2\nv_lshlrev_b32 v11, 2, v0")
    e(f"s_mul_i32 s42, s30, {16*3584}\ns_lshl_b32 s31, s91, 8\ns_add_u32 s42, s42, s31")
    e("s_and_b32 s31, s30, 1\ns_lshl_b32 s31, s31, 8\ns_lshr_b32 s29, s30, 1\ns_mul_i32 s43, s29, 7168\ns_add_u32 s43, s43, s31")
    e(f"s_lshl_b32 s31, s91, 9\ns_add_u32 s43, s43, s31\ns_lshl_b32 s45, s30, 8\ns_add_u32 s45, s45, {CSL}")
    srd(e, 4, 58, 448*3584); srd(e, 8, 34, 2*7168, WS_CS)
    e("s_waitcnt vmcnt(0)\ns_barrier")
    e("s_mov_b32 m0, s45\ns_nop 0\nbuffer_load_dword v11, s[8:11], s43 offen lds")
    def issue(ch):
        for i in range(4):
            e(f"s_add_u32 m0, s44, {ch*16384 + i*1024}\ns_add_u32 s30, s42, {(64*ch + 4*i)*3584}")
            e("buffer_load_dwordx4 v10, s[4:7], s30 offen lds")
    issued = 3
    for ch in range(issued): issue(ch)
    for ch in range(7):
        e(f"s_waitcnt vmcnt({4*(issued-ch-1)})\ns_barrier")
        while issued < min(7, ch + 5): issue(issued); issued += 1
    e("s_barrier")
    srd(e, 4, 84, 1792*896)
    e("v_lshrrev_b32 v2, 3, v0\nv_and_b32 v3, 7, v0\nv_bfe_u32 v4, v0, 4, 1\nv_lshlrev_b32 v4, 2, v4\nv_xor_b32 v3, v3, v4")
    e("v_mul_u32_u24 v2, 896, v2\nv_lshl_add_u32 v10, v3, 4, v2")
    for dw in (4, 0):
        e(f"s_sub_u32 s31, s24, {dw}\ns_mul_i32 s42, s31, {32*896}\ns_lshl_b32 s30, s93, 7\ns_add_u32 s42, s42, s30\ns_lshl_b32 s44, s31, 14")
        for i in range(4):
            for j in range(4):
                e(f"s_add_u32 m0, s44, {i*4096 + j*1024}\ns_add_u32 s30, s42, {(8*32*i + 8*j)*896}")
                e("buffer_load_dwordx4 v10, s[4:7], s30 offen lds")
    e(f"s_barrier\ns_waitcnt vmcnt(0)\ns_barrier\ns_branch {name}_C")
    e(f"{name}_cB:")
    phase_b(e, name, st)
    e("s_waitcnt vmcnt(0)")
    st()
    e("s_barrier")
    signal_and_poll(e, name, 'B', 16, False)
    st()
    e(f"{name}_C:")
    phase_t2(e, name, 'ffn2', st)
    st.flush(name, 'c')
    e(f"{name}_end:\ns_endpgm")
```

```python
import sys
from common import *
from gemm import gen_gemm
from attn import gen_attn
from t2 import gen_t2
from t1b import gen_ffn1
src = open('sequential_preLN__mha_block__dense_activation_gelu__prompt.s.ref').read().split("\n")
hdr = [l for l in src if l.startswith(";") and "offset" in l.split("shape")[0] or l.startswith("; Kernarg")]
K = [(MAIN, 'qkv', 220, 163840), ("attn_kernel", 'attn', 256, 143616)]
PROF0 = PROF
DOC = '''; Launch 1: LayerNorm-folded QKV projection (row statistics and weight column sums gathered in the K loop),
;   Q/K/V written as MFMA fragments; spare workgroups build w1 column sums and clear the hand-off counters.
; Launch 2: attention (eight key ranges per workgroup, exact-max fallback when a row sum leaves [2^-60, 2^60]),
'''
nk = int(sys.argv[2]) if len(sys.argv) > 2 else len(K)
out = "\n".join(hdr) + "\n"
for n, k, g, lds in K[:nk]:
    out += f"; @launch kernel={n} grid=({g},1,1) block=(512,1,1) lds={lds}\n"
out += '.amdgcn_target "amdgcn-amd-amdhsa--gfx950"\n.text\n' + DOC
for n, k, g, lds in K[:nk]:
    import common
    common.PROF = PROF0 if k == 'attn' else 0
    out += gen_attn(n) if k == 'attn' else gen_t2(n, k) if k in ('wo','ffn2') else gen_ffn1(n) if k == 'ffn1' else gen_gemm(n, k)
out += '.section .rodata,"a"\n'
for n, k, g, lds in K[:nk]:
    out += kernel_desc(n)
import os, re
SC = os.environ.get("SC", "")
if SC:
    out = re.sub(r"(buffer_store_dword\w* .* offen[^\n]*)", lambda m: m.group(1) + " " + SC, out)
open(sys.argv[1], "w").write(out)
print(len(out), "bytes")
```
